```python
import torch

def _softmax(x, axis=-1):
    return torch.softmax(x, dim=axis)
def _gelu(x):
    return torch.nn.functional.gelu(x, approximate="tanh")
def _silu(x):
    return torch.nn.functional.silu(x)
def _sigmoid(x):
    return torch.sigmoid(x)
def _layernorm(x, axis=-1, eps=1e-5):
    m = x.mean(dim=axis, keepdim=True)
    v = x.var(dim=axis, keepdim=True, unbiased=False)
    return (x - m) / torch.sqrt(v + eps)
def _scatter_add(tgt, idx, src, axis=0):
    return tgt.clone().index_add_(axis, idx, src)
def _segment_sum(src, seg, n):
    out = torch.zeros((n,) + src.shape[1:], dtype=src.dtype)
    return out.index_add_(0, seg, src)
def _pad(x, pw):
    flat = tuple(v for pair in reversed(pw) for v in pair)
    return torch.nn.functional.pad(x, flat)

kernel_name = 'concat_heads__mha_block_cached__gqa_block_cached__near_ridge'

def setup_inputs():

    _w = (lambda a: (lambda t: t.to(torch.bfloat16) if t.is_floating_point() else t)(torch.as_tensor(a)))
    def _A_setup():
        B, Sq, D = 8, 192, 512
        H, Sk, Dh = 32, 1024, 128
        return {
            "x": _w((lambda *s: torch.randn(*s, dtype=torch.bfloat16) * 0.8)(B, Sq, D)),
            "k_cache": _w((lambda *s: torch.randn(*s, dtype=torch.bfloat16) * 0.8)(B, H, Sk, Dh)),
            "v_cache": _w((lambda *s: torch.randn(*s, dtype=torch.bfloat16) * 0.05)(B, H, Sk, Dh)),
            "wq": _w((lambda *s: torch.randn(*s, dtype=torch.bfloat16) * 0.8)(D, H * Dh) * (D ** -0.5)),
            "wo": _w((lambda *s: torch.randn(*s, dtype=torch.bfloat16) * 0.05)(H * Dh, D) * ((H * Dh) ** -0.5)),
        }
    _A_in = _A_setup()

    def _B_setup():
        B, Sq, D = 8, 192, 512
        Hq, Hkv, Sk, Dh = 32, 32, 1024, 128
        assert Hq % Hkv == 0, (Hq, Hkv)
        return {
            "x": _w((lambda *s: torch.randn(*s, dtype=torch.bfloat16) * 0.8)(B, Sq, D)),
            "k_cache": _w((lambda *s: torch.randn(*s, dtype=torch.bfloat16) * 0.8)(B, Hkv, Sk, Dh)),
            "v_cache": _w((lambda *s: torch.randn(*s, dtype=torch.bfloat16) * 0.05)(B, Hkv, Sk, Dh)),
            "wq": _w((lambda *s: torch.randn(*s, dtype=torch.bfloat16) * 0.8)(D, Hq * Dh) * (D ** -0.5)),
            "wo": _w((lambda *s: torch.randn(*s, dtype=torch.bfloat16) * 0.05)(Hq * Dh, D) * ((Hq * Dh) ** -0.5)),
        }
    _B_in = _B_setup()

    return {
        "A_x": _A_in["x"],
        "A_k_cache": _A_in["k_cache"],
        "A_v_cache": _A_in["v_cache"],
        "A_wq": _A_in["wq"],
        "A_wo": _A_in["wo"],
        "B_x": _B_in["x"],
        "B_k_cache": _B_in["k_cache"],
        "B_v_cache": _B_in["v_cache"],
        "B_wq": _B_in["wq"],
        "B_wo": _B_in["wo"],
    }

def reference(A_x, A_k_cache, A_v_cache, A_wq, A_wo, B_x, B_k_cache, B_v_cache, B_wq, B_wo):
    def _A_ref(x, k_cache, v_cache, wq, wo):
        B, Sq, D = x.shape
        H, Dh = 32, 128
        q = (lambda x, *d: x.permute(*d))((x @ wq).reshape(B, Sq, H, Dh), 0, 2, 1, 3)
        scores = torch.einsum("bhqd,bhkd->bhqk", q, k_cache) * (Dh ** -0.5)
        p = _softmax(scores, axis=-1)
        o = torch.einsum("bhqk,bhkd->bhqd", p, v_cache)
        return (lambda x, *d: x.permute(*d))(o, 0, 2, 1, 3).reshape(B, Sq, H * Dh) @ wo

    def _B_ref(x, k_cache, v_cache, wq, wo):
        B, Sq, D = x.shape
        Hq, Dh = 32, 128
        Hkv = k_cache.shape[1]
        rep = Hq // Hkv
        q = (lambda x, *d: x.permute(*d))((x @ wq).reshape(B, Sq, Hq, Dh), 0, 2, 1, 3)
        k = (lambda x, n, axis: torch.repeat_interleave(x, n, dim=axis))(k_cache, rep, axis=1)
        v = (lambda x, n, axis: torch.repeat_interleave(x, n, dim=axis))(v_cache, rep, axis=1)
        scores = torch.einsum("bhqd,bhkd->bhqk", q, k) * (Dh ** -0.5)
        p = _softmax(scores, axis=-1)
        o = torch.einsum("bhqk,bhkd->bhqd", p, v)
        return (lambda x, *d: x.permute(*d))(o, 0, 2, 1, 3).reshape(B, Sq, Hq * Dh) @ wo

    a = _A_ref(A_x, A_k_cache, A_v_cache, A_wq, A_wo)
    b = _B_ref(B_x, B_k_cache, B_v_cache, B_wq, B_wo)
    return torch.concatenate([a, b], axis=-1)
```

```python
import re
import sys

NAME = "concat_heads__mha_block_cached__gqa_block_cached__near_ridge"
OUT = f"cdna_kernels/{NAME}.s"

VRE = re.compile(r"\bv\[(\d+):(\d+)\]|\bv(\d+)\b")


def regs_of(tok):
    out = set()
    for m in VRE.finditer(tok):
        if m.group(3) is not None:
            out.add(int(m.group(3)))
        else:
            out.update(range(int(m.group(1)), int(m.group(2)) + 1))
    return out


class Em:
    def __init__(self):
        self.lines = []
        self.hist = []

    def raw(self, t):
        self.lines.append(t)

    def label(self, name):
        self.lines.append(f"{name}:")

    def fence(self):
        self.i("s_nop 7")

    def i(self, text):
        text = text.strip()
        mn = text.split()[0]
        ops = text[len(mn):].strip()
        opl = [o.strip() for o in ops.split(",")] if ops else []
        kind = "other"
        rd, wr, srcc = set(), set(), set()
        if mn.startswith("v_mfma"):
            kind = "mfma"
            wr = regs_of(opl[0])
            rd = regs_of(opl[1]) | regs_of(opl[2])
            srcc = regs_of(opl[3])
        elif mn.startswith("v_permlane"):
            kind = "perm"
            wr = regs_of(opl[0]) | regs_of(opl[1])
            rd = set(wr)
        elif mn.startswith("v_cmp") or mn.startswith("v_readfirstlane") or mn.startswith("v_readlane"):
            kind = "valu"
            for o in opl[1:]:
                rd |= regs_of(o)
        elif mn.startswith("v_"):
            kind = "trans" if re.match(r"v_(exp|log|rcp|rsq|sqrt|sin|cos)_", mn) else "valu"
            wr = regs_of(opl[0])
            for o in opl[1:]:
                rd |= regs_of(o)
            if mn.startswith("v_fmac") or mn.startswith("v_pk_fmac"):
                rd |= wr
        elif mn.startswith("ds_read") or (mn.startswith("buffer_load") and " lds" not in text) or mn.startswith("global_load"):
            kind = "mem"
            wr = regs_of(opl[0])
            for o in opl[1:]:
                rd |= regs_of(o)
        elif mn.startswith("ds_write") or mn.startswith("buffer_store") or mn.startswith("global_store") or mn.startswith("buffer_load"):
            kind = "store" if "store" in mn else "mem"
            for o in opl:
                rd |= regs_of(o)
        elif mn == "s_nop":
            kind = "nop"
        need = self._need(kind, rd, wr, srcc)
        if need > 0:
            self._push("s_nop %d" % (need - 1), "nop", set(), set(), set(), need)
        ws = 1
        if kind == "nop":
            ws = int(ops) + 1
        self._push(text, kind, rd, wr, srcc, ws)

    def _push(self, text, kind, rd, wr, srcc, ws):
        self.lines.append("    " + text)
        self.hist.append((kind, rd, wr, srcc, ws))
        if len(self.hist) > 24:
            self.hist.pop(0)

    def _need(self, kind, rd, wr, srcc):
        need = 0
        dist = 0
        for (pk, prd, pwr, psrcc, pws) in reversed(self.hist):
            req = 0
            if pk == "mfma":
                if kind == "mfma":
                    if rd & pwr:
                        req = 8
                    elif srcc & pwr:
                        req = 0 if srcc == pwr else 6
                    elif wr & pwr:
                        req = 8
                elif kind in ("valu", "trans", "perm", "mem", "store"):
                    if (rd | wr) & pwr:
                        req = 8
                    elif kind in ("valu", "trans", "perm") and (wr & psrcc):
                        req = 3
            elif pk in ("valu", "trans", "perm"):
                if kind == "mfma" and ((rd | srcc) & pwr):
                    req = 2
                elif kind == "perm" and (rd & pwr):
                    req = 2
                elif pk == "trans" and kind in ("valu", "perm") and (rd & pwr):
                    req = 1
            elif pk == "store":
                if kind in ("valu", "trans", "perm") and (wr & prd):
                    req = 2
                elif kind == "mem" and (wr & prd):
                    req = 1
            if req > dist:
                need = max(need, req - dist)
            dist += pws
            if dist >= 12:
                break
        return need


class VmQ:
    def __init__(self):
        self.q = []

    def issue(self, tag, n=1):
        self.q += [tag] * n

    def wait_n(self, tags):
        last = -1
        for idx, t in enumerate(self.q):
            if t in tags:
                last = idx
        n = len(self.q) - 1 - last
        self.q = self.q[last + 1:]
        return n


ACC = 0
QF = 96
SS = 144
XS = 96
FR = 192
KA = 224
VA = 228
DE = 236
DO = 237
MC = 238
LS = 241
T0 = 244


def acc(dt, qt):
    b = ACC + (dt * 3 + qt) * 4
    return f"v[{b}:{b+3}]"


def qf(c, qt):
    b = QF + (c * 3 + qt) * 4
    return b


def ss(kt, qt):
    return SS + (kt * 3 + qt) * 4


def fr(i):
    b = FR + (i % 8) * 4
    return b


def pv_step(e, slot, bf, nfl=7):
    order = [(kc, dt) for kc in range(2) for dt in range(8)]
    n = len(order)
    issued = 0

    def issue(i):
        kc, dt = order[i]
        f = fr(i)
        off = slot * 16384 + kc * 8192
        e.i(f"ds_read_b64_tr_b16 v[{f}:{f+1}], v{VA+dt} offset:{off}")
        e.i(f"ds_read_b64_tr_b16 v[{f+2}:{f+3}], v{VA+dt} offset:{off+4096}")

    while issued < min(nfl, n):
        issue(issued)
        issued += 1
    for i in range(n):
        kc, dt = order[i]
        outstanding = (issued - i - 1) * 2
        e.i(f"s_waitcnt lgkmcnt({outstanding})")
        f = fr(i)
        for qt in range(3):
            b = bf(kc, qt)
            e.i(f"v_mfma_f32_16x16x32_bf16 {acc(dt,qt)}, v[{f}:{f+3}], v[{b}:{b+3}], {acc(dt,qt)}")
        if issued < n:
            issue(issued)
            issued += 1


def setup_lds_addrs(e, sW):
    t = T0
    e.i(f"v_mbcnt_lo_u32_b32 v{t}, -1, 0")
    e.i(f"v_mbcnt_hi_u32_b32 v{t}, -1, v{t}")
    e.i(f"v_lshrrev_b32 v{t+1}, 4, v{t}")
    e.i(f"v_and_b32 v{t+2}, 15, v{t}")
    e.i(f"v_and_b32 v{t+3}, 7, v{t+2}")
    e.i(f"v_lshlrev_b32 v{t+3}, 1, v{t+3}")
    for c in range(4):
        e.i(f"v_add_u32 v{t+4}, {4*c}, v{t+1}")
        e.i(f"v_xor_b32 v{t+4}, v{t+4}, v{t+3}")
        e.i(f"v_lshlrev_b32 v{t+4}, 4, v{t+4}")
        e.i(f"v_lshl_add_u32 v{KA+c}, v{t+2}, 8, v{t+4}")
    e.i(f"v_lshrrev_b32 v{t+3}, 2, v{t+2}")
    e.i(f"v_lshl_add_u32 v{t+3}, v{t+1}, 2, v{t+3}")
    e.i(f"v_and_b32 v{t+4}, 7, v{t+3}")
    e.i(f"v_lshlrev_b32 v{t+4}, 1, v{t+4}")
    e.i(f"v_and_b32 v{t+5}, 3, v{t+2}")
    e.i(f"v_lshrrev_b32 v{t+6}, 1, v{t+5}")
    e.i(f"v_and_b32 v{t+5}, 1, v{t+5}")
    e.i(f"v_lshlrev_b32 v{t+5}, 3, v{t+5}")
    e.i(f"v_lshl_add_u32 v{t+5}, v{t+3}, 8, v{t+5}")
    for dt in range(8):
        e.i(f"v_add_u32 v{t+7}, {2*dt}, v{t+6}")
        e.i(f"v_xor_b32 v{t+7}, v{t+7}, v{t+4}")
        e.i(f"v_lshl_add_u32 v{VA+dt}, v{t+7}, 4, v{t+5}")


def dma_regs(e, sW, stride_shift, de, do):
    t = T0
    e.i(f"v_mbcnt_lo_u32_b32 v{t}, -1, 0")
    e.i(f"v_mbcnt_hi_u32_b32 v{t}, -1, v{t}")
    e.i(f"v_lshrrev_b32 v{t+1}, 4, v{t}")
    e.i(f"v_and_b32 v{t+2}, 15, v{t}")
    e.i(f"v_lshlrev_b32 v{t+3}, 1, v{t+1}")
    e.i(f"v_xor_b32 v{t+4}, v{t+2}, v{t+3}")
    e.i(f"v_lshlrev_b32 v{t+4}, 4, v{t+4}")
    e.i(f"v_add_u32 v{t+3}, 8, v{t+3}")
    e.i(f"v_xor_b32 v{t+5}, v{t+2}, v{t+3}")
    e.i(f"v_lshlrev_b32 v{t+5}, 4, v{t+5}")
    e.i(f"v_lshl_add_u32 v{t+1}, s{sW}, 4, v{t+1}")
    e.i(f"v_lshlrev_b32 v{t+1}, {stride_shift}, v{t+1}")
    e.i(f"v_add_u32 v{de}, v{t+1}, v{t+4}")
    e.i(f"v_add_u32 v{do}, v{t+1}, v{t+5}")


def kernel_attn(e):
    KN = "attn_kernel"
    e.raw(f".globl {KN}\n.p2align 8\n.type {KN},@function\n{KN}:")
    sK, sV, sWq, sX, sO = 8, 12, 16, 20, 24
    sWave, sM0, sKoff, sVoff, sTmp, sC, sCnt = 28, 29, 30, 31, 32, 33, 34
    e.i("s_cmp_ge_u32 s2, 512")
    e.i("s_cbranch_scc1 L_attn_end")
    e.i("s_lshr_b32 s3, s2, 8")
    e.i("s_mul_i32 s3, s3, 40")
    e.i("s_add_u32 s4, s0, s3")
    e.i("s_addc_u32 s5, s1, 0")
    e.i("s_load_dwordx8 s[36:43], s[4:5], 0")
    e.i("s_load_dwordx2 s[44:45], s[0:1], 96")
    e.i("v_lshrrev_b32 v1, 6, v0")
    e.i("s_nop 0")
    e.i("v_readfirstlane_b32 s28, v1")
    e.i("s_and_b32 s6, s2, 255")
    e.i("s_lshl_b32 s7, s6, 18")
    e.i("s_lshr_b32 s46, s6, 5")
    e.i("s_and_b32 s47, s6, 31")
    e.i("s_lshr_b32 s48, s2, 8")
    e.i("s_waitcnt lgkmcnt(0)")
    e.i(f"s_add_u32 s{sK}, s38, s7")
    e.i(f"s_addc_u32 s{sK+1}, s39, 0")
    e.i(f"s_mov_b32 s{sK+2}, 262144")
    e.i(f"s_mov_b32 s{sK+3}, 0x00020000")
    e.i(f"s_add_u32 s{sV}, s40, s7")
    e.i(f"s_addc_u32 s{sV+1}, s41, 0")
    e.i(f"s_mov_b32 s{sV+2}, 262144")
    e.i(f"s_mov_b32 s{sV+3}, 0x00020000")
    e.i("s_lshl_b32 s49, s47, 8")
    e.i(f"s_add_u32 s{sWq}, s42, s49")
    e.i(f"s_addc_u32 s{sWq+1}, s43, 0")
    e.i(f"s_mov_b32 s{sWq+2}, {511*8192+256}")
    e.i(f"s_mov_b32 s{sWq+3}, 0x00020000")
    e.i("s_mul_i32 s50, s46, 196608")
    e.i(f"s_add_u32 s{sX}, s36, s50")
    e.i(f"s_addc_u32 s{sX+1}, s37, 0")
    e.i(f"s_mov_b32 s{sX+2}, 196608")
    e.i(f"s_mov_b32 s{sX+3}, 0x00020000")
    e.i("s_mul_i32 s51, s48, 12582912")
    e.i("s_mul_i32 s52, s46, 1572864")
    e.i("s_add_u32 s51, s51, s52")
    e.i("s_add_u32 s51, s51, s49")
    e.i(f"s_add_u32 s{sO}, s44, s51")
    e.i(f"s_addc_u32 s{sO+1}, s45, 0")
    e.i(f"s_mov_b32 s{sO+2}, {191*8192+256}")
    e.i(f"s_mov_b32 s{sO+3}, 0x00020000")
    e.i(f"s_lshl_b32 s{sM0}, s{sWave}, 12")
    e.i(f"s_mov_b32 s{sC}, 0x3e0293ee")
    setup_lds_addrs(e, sWave)
    dma_regs(e, sWave, 13, T0 + 7, T0 + 8)
    WE, WO = T0 + 7, T0 + 8
    XA = T0 + 9
    e.i(f"v_mbcnt_lo_u32_b32 v{T0}, -1, 0")
    e.i(f"v_mbcnt_hi_u32_b32 v{T0}, -1, v{T0}")
    e.i(f"v_and_b32 v{T0+1}, 15, v{T0}")
    e.i(f"v_lshrrev_b32 v{T0+2}, 4, v{T0}")
    e.i(f"s_mul_i32 s{sTmp}, s{sWave}, 48")
    e.i(f"v_add_u32 v{T0+1}, s{sTmp}, v{T0+1}")
    e.i(f"v_lshlrev_b32 v{T0+1}, 10, v{T0+1}")
    e.i(f"v_lshl_add_u32 v{XA}, v{T0+2}, 3, v{T0+1}")
    e.i(f"v_add_u32 v{XA+1}, 0x4000, v{XA}")
    e.i(f"v_add_u32 v{XA+2}, 0x8000, v{XA}")
    for r in range(96):
        e.i(f"v_mov_b32 v{ACC+r}, 0")

    vq = VmQ()

    def issue_tile(j):
        slot = j % 4
        e.i(f"s_add_u32 m0, s{sM0}, {slot*16384}")
        if j < 8:
            for i in range(4):
                e.i(f"s_mov_b32 s{sTmp}, {(64*j+4*i)*8192 - 1024*i}")
                e.i(f"buffer_load_dwordx4 v{WE if i%2==0 else WO}, s[{sWq}:{sWq+3}], s{sTmp} offen offset:{1024*i} lds")
        else:
            t = (j - 8) // 2
            srd = sK if (j - 8) % 2 == 0 else sV
            e.i(f"s_mov_b32 s{sTmp}, {t*16384}")
            for i in range(4):
                e.i(f"buffer_load_dwordx4 v{DE if i%2==0 else DO}, s[{srd}:{srd+3}], s{sTmp} offen offset:{1024*i} lds")
        vq.issue(("T", j), 4)

    def issue_x(j):
        base = XS + (j % 4) * 24
        for kc in range(2):
            for qt in range(3):
                b = base + (kc * 3 + qt) * 4
                off = 128 * j + 64 * kc
                e.i(f"buffer_load_dwordx2 v[{b}:{b+1}], v{XA+qt}, s[{sX}:{sX+3}], 0 offen offset:{off}")
                e.i(f"buffer_load_dwordx2 v[{b+2}:{b+3}], v{XA+qt}, s[{sX}:{sX+3}], 0 offen offset:{off+32}")
        vq.issue(("X", j), 12)

    dma_done = False
    dma_regs(e, sWave, 8, DE, DO)
    for j in range(3):
        issue_tile(j)
        issue_x(j)
    for j in range(8):
        n = vq.wait_n({("T", j), ("X", j)})
        e.i(f"s_waitcnt vmcnt({n})")
        e.i("s_barrier")
        issue_tile(j + 3)
        if j + 3 < 8:
            issue_x(j + 3)
        base = XS + (j % 4) * 24
        pv_step(e, j % 4, lambda kc, qt: base + (kc * 3 + qt) * 4)
    for c in range(4):
        for qt in range(3):
            a = ACC + ((2 * c) * 3 + qt) * 4
            b = ACC + ((2 * c + 1) * 3 + qt) * 4
            q = qf(c, qt)
            e.i(f"v_cvt_pk_bf16_f32 v{q}, v{a}, v{a+1}")
            e.i(f"v_cvt_pk_bf16_f32 v{q+1}, v{a+2}, v{a+3}")
            e.i(f"v_cvt_pk_bf16_f32 v{q+2}, v{b}, v{b+1}")
            e.i(f"v_cvt_pk_bf16_f32 v{q+3}, v{b+2}, v{b+3}")
    for c in range(4):
        for qt in range(3):
            q = qf(c, qt)
            e.i(f"v_permlane32_swap_b32 v{q}, v{q+2}")
            e.i(f"v_permlane32_swap_b32 v{q+1}, v{q+3}")
    for c in range(4):
        for qt in range(3):
            q = qf(c, qt)
            e.i(f"v_permlane16_swap_b32 v{q}, v{q+2}")
            e.i(f"v_permlane16_swap_b32 v{q+1}, v{q+3}")
    import os
    if os.environ.get("DEBUG_Q"):
        OA = T0 + 4
        e.i(f"v_mbcnt_lo_u32_b32 v{T0}, -1, 0")
        e.i(f"v_mbcnt_hi_u32_b32 v{T0}, -1, v{T0}")
        e.i(f"v_and_b32 v{T0+1}, 15, v{T0}")
        e.i(f"v_lshrrev_b32 v{T0+2}, 4, v{T0}")
        e.i(f"s_mul_i32 s{sTmp}, s{sWave}, 48")
        e.i(f"v_add_u32 v{T0+1}, s{sTmp}, v{T0+1}")
        e.i(f"v_lshlrev_b32 v{T0+1}, 13, v{T0+1}")
        e.i(f"v_lshl_add_u32 v{OA}, v{T0+2}, 4, v{T0+1}")
        e.i(f"v_add_u32 v{OA+1}, 0x20000, v{OA}")
        e.i(f"v_add_u32 v{OA+2}, 0x40000, v{OA}")
        for c in range(4):
            for qt in range(3):
                q = qf(c, qt)
                e.i(f"buffer_store_dwordx4 v[{q}:{q+3}], v{OA+qt}, s[{sO}:{sO+3}], 0 offen offset:{64*c}")
        e.i("s_endpgm")
    for r in range(96):
        e.i(f"v_mov_b32 v{ACC+r}, 0")
    for qt in range(3):
        e.i(f"v_mov_b32 v{MC+qt}, 0xf149f2ca")
        e.i(f"v_mov_b32 v{LS+qt}, 0")
    e.i(f"s_mov_b32 s{sKoff}, {2*16384}")
    e.i(f"s_mov_b32 s{sVoff}, {1*16384}")
    e.i(f"s_mov_b32 s{sCnt}, 8")
    e.fence()
    e.label("L_attn_loop")

    def loop_issue(slot, is_k):
        e.i(f"s_add_u32 m0, s{sM0}, {slot*16384}")
        e.i("s_nop 0")
        srd = sK if is_k else sV
        so = sKoff if is_k else sVoff
        for i in range(4):
            e.i(f"buffer_load_dwordx4 v{DE if i%2==0 else DO}, s[{srd}:{srd+3}], s{so} offen offset:{1024*i} lds")
        e.i(f"s_add_u32 s{so}, s{so}, 16384")

    for half in range(2):
        ks, vs = 2 * half, 2 * half + 1
        e.i("s_waitcnt vmcnt(8)")
        e.i("s_barrier")
        loop_issue((ks + 3) % 4, False)
        order = [(kt, c) for kt in range(4) for c in range(4)]
        n = len(order)
        issued = 0

        def kissue(i):
            kt, c = order[i]
            f = fr(i)
            e.i(f"ds_read_b128 v[{f}:{f+3}], v{KA+c} offset:{ks*16384 + kt*4096}")

        while issued < 8:
            kissue(issued)
            issued += 1
        for i in range(n):
            kt, c = order[i]
            e.i(f"s_waitcnt lgkmcnt({issued-i-1})")
            f = fr(i)
            for qt in range(3):
                s = ss(kt, qt)
                q = qf(c, qt)
                cin = "0" if c == 0 else f"v[{s}:{s+3}]"
                e.i(f"v_mfma_f32_16x16x32_bf16 v[{s}:{s+3}], v[{f}:{f+3}], v[{q}:{q+3}], {cin}")
            if issued < n:
                kissue(issued)
                issued += 1
        tm = T0
        tu = T0 + 3
        for qt in range(3):
            vals = [ss(kt, qt) + r for kt in range(4) for r in range(4)]
            e.i(f"v_max3_f32 v{tm+qt}, v{vals[0]}, v{vals[1]}, v{vals[2]}")
            k = 3
            while k < 16:
                v2 = vals[k + 1] if k + 1 < 16 else vals[k]
                e.i(f"v_max3_f32 v{tm+qt}, v{tm+qt}, v{vals[k]}, v{v2}")
                k += 2
        for swap in ("v_permlane32_swap_b32", "v_permlane16_swap_b32"):
            for qt in range(3):
                e.i(f"v_mov_b32 v{tu+qt}, v{tm+qt}")
            for qt in range(3):
                e.i(f"{swap} v{tm+qt}, v{tu+qt}")
            for qt in range(3):
                e.i(f"v_max_f32 v{tm+qt}, v{tm+qt}, v{tu+qt}")
        for qt in range(3):
            e.i(f"v_mul_f32 v{tm+qt}, s{sC}, v{tm+qt}")
        for qt in range(3):
            e.i(f"v_sub_f32 v{tu+qt}, v{tm+qt}, v{MC+qt}")
        e.i(f"v_max3_f32 v{tu}, v{tu}, v{tu+1}, v{tu+2}")
        e.i(f"v_cmp_lt_f32 vcc, 0x41000000, v{tu}")
        e.i("s_nop 4")
        lbl = f"L_attn_nors{half}"
        e.i(f"s_cbranch_vccz {lbl}")
        for qt in range(3):
            e.i(f"v_max_f32 v{tm+qt}, v{tm+qt}, v{MC+qt}")
        for qt in range(3):
            e.i(f"v_sub_f32 v{tu+qt}, v{MC+qt}, v{tm+qt}")
        for qt in range(3):
            e.i(f"v_exp_f32 v{tu+qt}, v{tu+qt}")
        for qt in range(3):
            e.i(f"v_mov_b32 v{MC+qt}, v{tm+qt}")
        for qt in range(3):
            e.i(f"v_mul_f32 v{LS+qt}, v{LS+qt}, v{tu+qt}")
        for dt in range(8):
            for qt in range(3):
                for r in range(4):
                    a = ACC + (dt * 3 + qt) * 4 + r
                    e.i(f"v_mul_f32 v{a}, v{a}, v{tu+qt}")
        e.label(lbl)
        e.fence()
        for qt in range(3):
            for kt in range(4):
                for r in range(4):
                    s = ss(kt, qt) + r
                    e.i(f"v_fma_f32 v{s}, v{s}, s{sC}, -v{MC+qt}")
        for kt in range(4):
            for r in range(4):
                for qt in range(3):
                    s = ss(kt, qt) + r
                    e.i(f"v_exp_f32 v{s}, v{s}")
        for kt in range(4):
            for r in range(4):
                for qt in range(3):
                    s = ss(kt, qt) + r
                    e.i(f"v_add_f32 v{LS+qt}, v{LS+qt}, v{s}")
        for kc in range(2):
            for qt in range(3):
                a = ss(2 * kc, qt)
                b = ss(2 * kc + 1, qt)
                e.i(f"v_cvt_pk_bf16_f32 v{a}, v{a}, v{a+1}")
                e.i(f"v_cvt_pk_bf16_f32 v{a+1}, v{a+2}, v{a+3}")
                e.i(f"v_cvt_pk_bf16_f32 v{a+2}, v{b}, v{b+1}")
                e.i(f"v_cvt_pk_bf16_f32 v{a+3}, v{b+2}, v{b+3}")
        e.i("s_waitcnt vmcnt(8)")
        e.i("s_barrier")
        loop_issue((vs + 3) % 4, True)
        pv_step(e, vs, lambda kc, qt: ss(2 * kc, qt))
    e.i(f"s_sub_u32 s{sCnt}, s{sCnt}, 1")
    e.i(f"s_cmp_lg_u32 s{sCnt}, 0")
    e.i("s_cbranch_scc1 L_attn_loop")
    e.fence()
    tu = T0
    for swap in ("v_permlane32_swap_b32", "v_permlane16_swap_b32"):
        for qt in range(3):
            e.i(f"v_mov_b32 v{tu+qt}, v{LS+qt}")
        for qt in range(3):
            e.i(f"{swap} v{LS+qt}, v{tu+qt}")
        for qt in range(3):
            e.i(f"v_add_f32 v{LS+qt}, v{LS+qt}, v{tu+qt}")
    for qt in range(3):
        e.i(f"v_rcp_f32 v{LS+qt}, v{LS+qt}")
    for dt in range(8):
        for qt in range(3):
            for r in range(4):
                a = ACC + (dt * 3 + qt) * 4 + r
                e.i(f"v_mul_f32 v{a}, v{a}, v{LS+qt}")
    OA = T0 + 4
    e.i(f"v_mbcnt_lo_u32_b32 v{T0}, -1, 0")
    e.i(f"v_mbcnt_hi_u32_b32 v{T0}, -1, v{T0}")
    e.i(f"v_and_b32 v{T0+1}, 15, v{T0}")
    e.i(f"v_lshrrev_b32 v{T0+2}, 4, v{T0}")
    e.i(f"s_mul_i32 s{sTmp}, s{sWave}, 48")
    e.i(f"v_add_u32 v{T0+1}, s{sTmp}, v{T0+1}")
    e.i(f"v_lshlrev_b32 v{T0+1}, 13, v{T0+1}")
    e.i(f"v_lshl_add_u32 v{OA}, v{T0+2}, 4, v{T0+1}")
    e.i(f"v_add_u32 v{OA+1}, 0x20000, v{OA}")
    e.i(f"v_add_u32 v{OA+2}, 0x40000, v{OA}")
    for c in range(4):
        for qt in range(3):
            a = ACC + ((2 * c) * 3 + qt) * 4
            b = ACC + ((2 * c + 1) * 3 + qt) * 4
            q = qf(c, qt)
            e.i(f"v_cvt_pk_bf16_f32 v{q}, v{a}, v{a+1}")
            e.i(f"v_cvt_pk_bf16_f32 v{q+1}, v{a+2}, v{a+3}")
            e.i(f"v_cvt_pk_bf16_f32 v{q+2}, v{b}, v{b+1}")
            e.i(f"v_cvt_pk_bf16_f32 v{q+3}, v{b+2}, v{b+3}")
            e.i(f"buffer_store_dwordx4 v[{q}:{q+3}], v{OA+qt}, s[{sO}:{sO+3}], 0 offen offset:{64*c}")
    e.label("L_attn_end")
    e.i("s_endpgm")


def kernel_oproj(e):
    KN = "oproj_kernel"
    e.raw(f".globl {KN}\n.p2align 8\n.type {KN},@function\n{KN}:")
    sWo, sOi, sP = 8, 12, 16
    sWave, sM0, sTmp, sSo = 28, 29, 32, 33
    e.i("s_cmp_ge_u32 s2, 256")
    e.i("s_cbranch_scc1 L_oproj_end")
    e.i("s_and_b32 s40, s2, 3")
    e.i("s_lshr_b32 s41, s2, 2")
    e.i("s_and_b32 s41, s41, 7")
    e.i("s_lshr_b32 s42, s2, 5")
    e.i("s_and_b32 s42, s42, 1")
    e.i("s_lshr_b32 s43, s2, 6")
    e.i("s_mul_i32 s3, s42, 40")
    e.i("s_add_u32 s4, s0, s3")
    e.i("s_addc_u32 s5, s1, 0")
    e.i("s_load_dwordx2 s[36:37], s[4:5], 32")
    e.i("s_load_dwordx2 s[44:45], s[0:1], 96")
    e.i("v_lshrrev_b32 v1, 6, v0")
    e.i("s_nop 0")
    e.i("v_readfirstlane_b32 s28, v1")
    e.i("s_waitcnt lgkmcnt(0)")
    e.i("s_lshl_b32 s46, s40, 8")
    e.i("s_lshl_b32 s47, s43, 20")
    e.i("s_add_u32 s46, s46, s47")
    e.i(f"s_add_u32 s{sWo}, s36, s46")
    e.i(f"s_addc_u32 s{sWo+1}, s37, 0")
    e.i(f"s_mov_b32 s{sWo+2}, {1023*1024+256}")
    e.i(f"s_mov_b32 s{sWo+3}, 0x00020000")
    e.i("s_mul_i32 s46, s42, 12582912")
    e.i("s_mul_i32 s47, s41, 1572864")
    e.i("s_add_u32 s46, s46, s47")
    e.i("s_lshl_b32 s47, s43, 11")
    e.i("s_add_u32 s46, s46, s47")
    e.i(f"s_add_u32 s{sOi}, s44, s46")
    e.i(f"s_addc_u32 s{sOi+1}, s45, 0")
    e.i(f"s_mov_b32 s{sOi+2}, {191*8192+2048}")
    e.i(f"s_mov_b32 s{sOi+3}, 0x00020000")
    e.i("s_lshl_b32 s46, s43, 1")
    e.i("s_add_u32 s46, s46, s42")
    e.i("s_mul_i32 s46, s46, 1536")
    e.i("s_mul_i32 s47, s41, 192")
    e.i("s_add_u32 s46, s46, s47")
    e.i("s_lshl_b32 s46, s46, 11")
    e.i("s_lshl_b32 s47, s40, 9")
    e.i("s_add_u32 s46, s46, s47")
    e.i("s_add_u32 s46, s46, 0x2000000")
    e.i(f"s_add_u32 s{sP}, s44, s46")
    e.i(f"s_addc_u32 s{sP+1}, s45, 0")
    e.i(f"s_mov_b32 s{sP+2}, {191*2048+512}")
    e.i(f"s_mov_b32 s{sP+3}, 0x00020000")
    e.i(f"s_lshl_b32 s{sM0}, s{sWave}, 12")
    setup_lds_addrs(e, sWave)
    dma_regs(e, sWave, 10, DE, DO)
    XA = T0 + 8
    e.i(f"v_mbcnt_lo_u32_b32 v{T0}, -1, 0")
    e.i(f"v_mbcnt_hi_u32_b32 v{T0}, -1, v{T0}")
    e.i(f"v_and_b32 v{T0+1}, 15, v{T0}")
    e.i(f"v_lshrrev_b32 v{T0+2}, 4, v{T0}")
    e.i(f"s_mul_i32 s{sTmp}, s{sWave}, 48")
    e.i(f"v_add_u32 v{T0+1}, s{sTmp}, v{T0+1}")
    e.i(f"v_lshlrev_b32 v{T0+1}, 13, v{T0+1}")
    e.i(f"v_lshl_add_u32 v{XA}, v{T0+2}, 4, v{T0+1}")
    e.i(f"v_add_u32 v{XA+1}, 0x20000, v{XA}")
    e.i(f"v_add_u32 v{XA+2}, 0x40000, v{XA}")
    for r in range(96):
        e.i(f"v_mov_b32 v{ACC+r}, 0")
    vq = VmQ()
    NT = 16

    def issue_tile(j):
        slot = j % 4
        e.i(f"s_add_u32 m0, s{sM0}, {slot*16384}")
        for i in range(4):
            e.i(f"s_mov_b32 s{sTmp}, {(64*j+4*i)*1024 - 1024*i}")
            e.i(f"buffer_load_dwordx4 v{DE if i%2==0 else DO}, s[{sWo}:{sWo+3}], s{sTmp} offen offset:{1024*i} lds")
        vq.issue(("T", j), 4)

    def issue_x(j):
        base = XS + (j % 4) * 24
        for kc in range(2):
            for qt in range(3):
                b = base + (kc * 3 + qt) * 4
                e.i(f"buffer_load_dwordx4 v[{b}:{b+3}], v{XA+qt}, s[{sOi}:{sOi+3}], 0 offen offset:{128*j+64*kc}")
        vq.issue(("X", j), 6)

    for j in range(3):
        issue_tile(j)
        issue_x(j)
    for j in range(NT):
        n = vq.wait_n({("T", j), ("X", j)})
        e.i(f"s_waitcnt vmcnt({n})")
        e.i("s_barrier")
        if j + 3 < NT:
            issue_tile(j + 3)
            issue_x(j + 3)
        base = XS + (j % 4) * 24
        pv_step(e, j % 4, lambda kc, qt: base + (kc * 3 + qt) * 4)
    OA = T0 + 4
    e.i(f"v_mbcnt_lo_u32_b32 v{T0}, -1, 0")
    e.i(f"v_mbcnt_hi_u32_b32 v{T0}, -1, v{T0}")
    e.i(f"v_and_b32 v{T0+1}, 15, v{T0}")
    e.i(f"v_lshrrev_b32 v{T0+2}, 4, v{T0}")
    e.i(f"s_mul_i32 s{sTmp}, s{sWave}, 48")
    e.i(f"v_add_u32 v{T0+1}, s{sTmp}, v{T0+1}")
    e.i(f"v_lshlrev_b32 v{T0+1}, 11, v{T0+1}")
    e.i(f"v_lshl_add_u32 v{OA}, v{T0+2}, 4, v{T0+1}")
    e.i(f"v_add_u32 v{OA+1}, 0x8000, v{OA}")
    e.i(f"v_add_u32 v{OA+2}, 0x10000, v{OA}")
    for nt in range(8):
        for qt in range(3):
            a = ACC + (nt * 3 + qt) * 4
            e.i(f"buffer_store_dwordx4 v[{a}:{a+3}], v{OA+qt}, s[{sP}:{sP+3}], 0 offen offset:{64*nt}")
    e.label("L_oproj_end")
    e.i("s_endpgm")


def kernel_reduce(e):
    KN = "reduce_kernel"
    e.raw(f".globl {KN}\n.p2align 8\n.type {KN},@function\n{KN}:")
    e.i("s_cmp_ge_u32 s2, 768")
    e.i("s_cbranch_scc1 L_red_end")
    e.i("s_load_dwordx2 s[4:5], s[0:1], 80")
    e.i("s_load_dwordx2 s[6:7], s[0:1], 96")
    e.i("s_lshl_b32 s3, s2, 8")
    e.i("v_add_u32 v1, s3, v0")
    e.i("s_waitcnt lgkmcnt(0)")
    e.i("s_add_u32 s8, s6, 0x2000000")
    e.i("s_addc_u32 s9, s7, 0")
    e.i(f"s_mov_b32 s10, {4*2*1536*2048}")
    e.i("s_mov_b32 s11, 0x00020000")
    e.i("s_mov_b32 s12, s4")
    e.i("s_mov_b32 s13, s5")
    e.i(f"s_mov_b32 s14, {1536*2048}")
    e.i("s_mov_b32 s15, 0x00020000")
    e.i("v_lshlrev_b32 v2, 5, v1")
    e.i("s_mov_b32 s16, 6291456")
    for sk in range(4):
        e.i(f"s_mul_i32 s17, s16, {sk}")
        e.i(f"buffer_load_dwordx4 v[{8+8*sk}:{11+8*sk}], v2, s[8:11], s17 offen")
        e.i(f"buffer_load_dwordx4 v[{12+8*sk}:{15+8*sk}], v2, s[8:11], s17 offen offset:16")
    e.i("v_cmp_le_u32 vcc, 98304, v1")
    e.i("v_cndmask_b32 v3, 0, 1, vcc")
    e.i("v_mul_u32_u24 v4, 98304, v3")
    e.i("v_sub_u32 v4, v1, v4")
    e.i("v_lshrrev_b32 v5, 6, v4")
    e.i("v_and_b32 v6, 63, v4")
    e.i("v_lshlrev_b32 v5, 11, v5")
    e.i("v_lshl_add_u32 v5, v3, 10, v5")
    e.i("v_lshl_add_u32 v5, v6, 4, v5")
    e.i("s_waitcnt vmcnt(0)")
    for sk in range(1, 4):
        for k in range(8):
            e.i(f"v_add_f32 v{8+k}, v{8+k}, v{8+8*sk+k}")
    e.i("v_cvt_pk_bf16_f32 v40, v8, v9")
    e.i("v_cvt_pk_bf16_f32 v41, v10, v11")
    e.i("v_cvt_pk_bf16_f32 v42, v12, v13")
    e.i("v_cvt_pk_bf16_f32 v43, v14, v15")
    e.i("buffer_store_dwordx4 v[40:43], v5, s[12:15], 0 offen")
    e.label("L_red_end")
    e.i("s_endpgm")


def desc(name, vgpr, sgpr=64):
    acc_off = (vgpr + 3) // 4 * 4
    return f""".amdhsa_kernel {name}
  .amdhsa_next_free_vgpr {vgpr}
  .amdhsa_next_free_sgpr {sgpr}
  .amdhsa_accum_offset {acc_off}
  .amdhsa_group_segment_fixed_size 0
  .amdhsa_kernarg_size 104
  .amdhsa_user_sgpr_count 2
  .amdhsa_user_sgpr_kernarg_segment_ptr 1
  .amdhsa_system_sgpr_workgroup_id_x 1
.end_amdhsa_kernel
"""


def main():
    e = Em()
    hdr = """; fused MHA block x2: attn (q-proj + flash attention, o -> ws) ; oproj (split-K 4 partials -> ws) ; reduce
; @launch kernel=attn_kernel grid=(512,1,1) block=(256,1,1) lds=65536
; @launch kernel=oproj_kernel grid=(256,1,1) block=(256,1,1) lds=65536
; @launch kernel=reduce_kernel grid=(768,1,1) block=(256,1,1) lds=0
.amdgcn_target "amdgcn-amd-amdhsa--gfx950"
.text"""
    e.raw(hdr)
    kernel_attn(e)
    e.hist = []
    kernel_oproj(e)
    e.hist = []
    kernel_reduce(e)
    e.raw('.section .rodata,"a"\n.p2align 6')
    e.raw(desc("attn_kernel", 256))
    e.raw(".p2align 6")
    e.raw(desc("oproj_kernel", 256))
    e.raw(".p2align 6")
    e.raw(desc("reduce_kernel", 48, 32))
    open(OUT, "w").write("\n".join(e.lines) + "\n")
    print("wrote", OUT, len(e.lines), "lines")


if __name__ == "__main__":
    main()
```

```python
import re
import sys

import os
NT = "" if os.environ.get("NONT") else " nt"
NAME = "concat_heads__mha_block_cached__gqa_block_cached__near_ridge"
OUT = f"cdna_kernels/{NAME}.s"

VRE = re.compile(r"\bv\[(\d+):(\d+)\]|\bv(\d+)\b")


def regs_of(tok):
    out = set()
    for m in VRE.finditer(tok):
        if m.group(3) is not None:
            out.add(int(m.group(3)))
        else:
            out.update(range(int(m.group(1)), int(m.group(2)) + 1))
    return out


class Em:
    def __init__(self):
        self.lines = []
        self.hist = []

    def raw(self, t):
        self.lines.append(t)

    def label(self, name):
        self.lines.append(f"{name}:")

    def fence(self):
        self.i("s_nop 7")

    def i(self, text):
        text = text.strip()
        mn = text.split()[0]
        ops = text[len(mn):].strip()
        opl = [o.strip() for o in ops.split(",")] if ops else []
        kind = "other"
        rd, wr, srcc = set(), set(), set()
        if mn.startswith("v_mfma"):
            kind = "mfma"
            wr = regs_of(opl[0])
            rd = regs_of(opl[1]) | regs_of(opl[2])
            srcc = regs_of(opl[3])
        elif mn.startswith("v_permlane"):
            kind = "perm"
            wr = regs_of(opl[0]) | regs_of(opl[1])
            rd = set(wr)
        elif mn.startswith("v_cmp") or mn.startswith("v_readfirstlane") or mn.startswith("v_readlane"):
            kind = "valu"
            for o in opl[1:]:
                rd |= regs_of(o)
        elif mn.startswith("v_"):
            kind = "trans" if re.match(r"v_(exp|log|rcp|rsq|sqrt|sin|cos)_", mn) else "valu"
            wr = regs_of(opl[0])
            for o in opl[1:]:
                rd |= regs_of(o)
            if mn.startswith("v_fmac") or mn.startswith("v_pk_fmac"):
                rd |= wr
        elif mn.startswith("ds_read") or (mn.startswith("buffer_load") and " lds" not in text) or mn.startswith("global_load"):
            kind = "mem"
            wr = regs_of(opl[0])
            for o in opl[1:]:
                rd |= regs_of(o)
        elif mn.startswith("ds_write") or mn.startswith("buffer_store") or mn.startswith("global_store") or mn.startswith("buffer_load"):
            kind = "store" if "store" in mn else "mem"
            for o in opl:
                rd |= regs_of(o)
        elif mn == "s_nop":
            kind = "nop"
        need = self._need(kind, rd, wr, srcc)
        if need > 0:
            self._push("s_nop %d" % (need - 1), "nop", set(), set(), set(), need)
        ws = 1
        if kind == "nop":
            ws = int(ops) + 1
        self._push(text, kind, rd, wr, srcc, ws)

    def _push(self, text, kind, rd, wr, srcc, ws):
        self.lines.append("    " + text)
        self.hist.append((kind, rd, wr, srcc, ws))
        if len(self.hist) > 24:
            self.hist.pop(0)

    def _need(self, kind, rd, wr, srcc):
        need = 0
        dist = 0
        for (pk, prd, pwr, psrcc, pws) in reversed(self.hist):
            req = 0
            if pk == "mfma":
                if kind == "mfma":
                    if rd & pwr:
                        req = 8
                    elif srcc & pwr:
                        req = 0 if srcc == pwr else 6
                    elif wr & pwr:
                        req = 8
                elif kind in ("valu", "trans", "perm", "mem", "store"):
                    if (rd | wr) & pwr:
                        req = 8
                    elif kind in ("valu", "trans", "perm") and (wr & psrcc):
                        req = 3
            elif pk in ("valu", "trans", "perm"):
                if kind == "mfma" and ((rd | srcc) & pwr):
                    req = 2
                elif kind == "perm" and (rd & pwr):
                    req = 2
                elif pk == "trans" and kind in ("valu", "perm") and (rd & pwr):
                    req = 1
            elif pk == "store":
                if kind in ("valu", "trans", "perm") and (wr & prd):
                    req = 2
                elif kind == "mem" and (wr & prd):
                    req = 1
            if req > dist:
                need = max(need, req - dist)
            dist += pws
            if dist >= 12:
                break
        return need


class VmQ:
    def __init__(self):
        self.q = []

    def issue(self, tag, n=1):
        self.q += [tag] * n

    def wait_n(self, tags):
        last = -1
        for idx, t in enumerate(self.q):
            if t in tags:
                last = idx
        n = len(self.q) - 1 - last
        self.q = self.q[last + 1:]
        return n


ACC = 0
QF = 96
SS = 144
XS = 96
FR = 192
KA = 224
VA = 228
DE = 236
DO = 237
MC = 238
LS = 241
T0 = 244


def acc(dt, qt):
    b = ACC + (dt * 3 + qt) * 4
    return f"v[{b}:{b+3}]"


def qf(c, qt):
    b = QF + (c * 3 + qt) * 4
    return b


def ss(kt, qt):
    return SS + (kt * 3 + qt) * 4


def fr(i):
    b = FR + (i % 8) * 4
    return b


def pv_step(e, slot, bf, nfl=7):
    order = [(kc, dt) for kc in range(2) for dt in range(8)]
    n = len(order)
    issued = 0

    def issue(i):
        kc, dt = order[i]
        f = fr(i)
        off = slot * 16384 + kc * 8192
        e.i(f"ds_read_b64_tr_b16 v[{f}:{f+1}], v{VA+dt} offset:{off}")
        e.i(f"ds_read_b64_tr_b16 v[{f+2}:{f+3}], v{VA+dt} offset:{off+4096}")

    while issued < min(nfl, n):
        issue(issued)
        issued += 1
    for i in range(n):
        kc, dt = order[i]
        outstanding = (issued - i - 1) * 2
        e.i(f"s_waitcnt lgkmcnt({outstanding})")
        f = fr(i)
        for qt in range(3):
            b = bf(kc, qt)
            e.i(f"v_mfma_f32_16x16x32_bf16 {acc(dt,qt)}, v[{f}:{f+3}], v[{b}:{b+3}], {acc(dt,qt)}")
        if issued < n:
            issue(issued)
            issued += 1


def setup_lds_addrs(e, sW):
    t = T0
    e.i(f"v_mbcnt_lo_u32_b32 v{t}, -1, 0")
    e.i(f"v_mbcnt_hi_u32_b32 v{t}, -1, v{t}")
    e.i(f"v_lshrrev_b32 v{t+1}, 4, v{t}")
    e.i(f"v_and_b32 v{t+2}, 15, v{t}")
    e.i(f"v_and_b32 v{t+3}, 7, v{t+2}")
    e.i(f"v_lshlrev_b32 v{t+3}, 1, v{t+3}")
    for c in range(4):
        e.i(f"v_add_u32 v{t+4}, {4*c}, v{t+1}")
        e.i(f"v_xor_b32 v{t+4}, v{t+4}, v{t+3}")
        e.i(f"v_lshlrev_b32 v{t+4}, 4, v{t+4}")
        e.i(f"v_lshl_add_u32 v{KA+c}, v{t+2}, 8, v{t+4}")
    e.i(f"v_lshrrev_b32 v{t+3}, 2, v{t+2}")
    e.i(f"v_lshl_add_u32 v{t+3}, v{t+1}, 2, v{t+3}")
    e.i(f"v_and_b32 v{t+4}, 7, v{t+3}")
    e.i(f"v_lshlrev_b32 v{t+4}, 1, v{t+4}")
    e.i(f"v_and_b32 v{t+5}, 3, v{t+2}")
    e.i(f"v_lshrrev_b32 v{t+6}, 1, v{t+5}")
    e.i(f"v_and_b32 v{t+5}, 1, v{t+5}")
    e.i(f"v_lshlrev_b32 v{t+5}, 3, v{t+5}")
    e.i(f"v_lshl_add_u32 v{t+5}, v{t+3}, 8, v{t+5}")
    for dt in range(8):
        e.i(f"v_add_u32 v{t+7}, {2*dt}, v{t+6}")
        e.i(f"v_xor_b32 v{t+7}, v{t+7}, v{t+4}")
        e.i(f"v_lshl_add_u32 v{VA+dt}, v{t+7}, 4, v{t+5}")


def dma_regs(e, sW, stride_shift, de, do, wperm=False):
    t = T0
    e.i(f"v_mbcnt_lo_u32_b32 v{t}, -1, 0")
    e.i(f"v_mbcnt_hi_u32_b32 v{t}, -1, v{t}")
    e.i(f"v_lshrrev_b32 v{t+1}, 4, v{t}")
    e.i(f"v_and_b32 v{t+2}, 15, v{t}")
    e.i(f"v_lshlrev_b32 v{t+3}, 1, v{t+1}")
    e.i(f"v_xor_b32 v{t+4}, v{t+2}, v{t+3}")
    e.i(f"v_lshlrev_b32 v{t+4}, 4, v{t+4}")
    e.i(f"v_add_u32 v{t+3}, 8, v{t+3}")
    e.i(f"v_xor_b32 v{t+5}, v{t+2}, v{t+3}")
    e.i(f"v_lshlrev_b32 v{t+5}, 4, v{t+5}")
    if wperm:
        e.i(f"s_lshr_b32 s55, s{sW}, 1")
        e.i(f"s_lshl_b32 s55, s55, 5")
        e.i(f"s_and_b32 s56, s{sW}, 1")
        e.i(f"s_lshl_b32 s56, s56, 2")
        e.i(f"s_add_u32 s55, s55, s56")
        e.i(f"v_add_u32 v{t+1}, s55, v{t+1}")
    else:
        e.i(f"v_lshl_add_u32 v{t+1}, s{sW}, 4, v{t+1}")
    e.i(f"v_lshlrev_b32 v{t+1}, {stride_shift}, v{t+1}")
    e.i(f"v_add_u32 v{de}, v{t+1}, v{t+4}")
    e.i(f"v_add_u32 v{do}, v{t+1}, v{t+5}")


def kernel_attn(e):
    KN = "attn_kernel"
    e.raw(f".globl {KN}\n.p2align 8\n.type {KN},@function\n{KN}:")
    sK, sV, sWq, sX, sO = 8, 12, 16, 20, 24
    sWave, sM0, sKoff, sVoff, sTmp, sC, sCnt, sT0, sKn, sVn = 28, 29, 30, 31, 32, 33, 34, 35, 53, 54
    e.i("s_cmp_ge_u32 s2, 512")
    e.i("s_cbranch_scc1 L_attn_end")
    e.i("s_lshr_b32 s3, s2, 8")
    e.i("s_mul_i32 s3, s3, 40")
    e.i("s_add_u32 s4, s0, s3")
    e.i("s_addc_u32 s5, s1, 0")
    e.i("s_load_dwordx8 s[36:43], s[4:5], 0")
    e.i("s_load_dwordx2 s[44:45], s[0:1], 96")
    e.i("v_lshrrev_b32 v1, 6, v0")
    e.i("s_nop 0")
    e.i("v_readfirstlane_b32 s28, v1")
    e.i("s_and_b32 s6, s2, 255")
    e.i("s_lshl_b32 s7, s6, 18")
    e.i("s_lshr_b32 s46, s6, 5")
    e.i("s_and_b32 s47, s6, 31")
    e.i("s_lshr_b32 s48, s2, 8")
    e.i("s_waitcnt lgkmcnt(0)")
    e.i(f"s_add_u32 s{sK}, s38, s7")
    e.i(f"s_addc_u32 s{sK+1}, s39, 0")
    e.i(f"s_mov_b32 s{sK+2}, 262144")
    e.i(f"s_mov_b32 s{sK+3}, 0x00020000")
    e.i(f"s_add_u32 s{sV}, s40, s7")
    e.i(f"s_addc_u32 s{sV+1}, s41, 0")
    e.i(f"s_mov_b32 s{sV+2}, 262144")
    e.i(f"s_mov_b32 s{sV+3}, 0x00020000")
    e.i("s_lshl_b32 s49, s47, 8")
    e.i(f"s_add_u32 s{sWq}, s42, s49")
    e.i(f"s_addc_u32 s{sWq+1}, s43, 0")
    e.i(f"s_mov_b32 s{sWq+2}, {511*8192+256}")
    e.i(f"s_mov_b32 s{sWq+3}, 0x00020000")
    e.i("s_mul_i32 s50, s46, 196608")
    e.i(f"s_add_u32 s{sX}, s36, s50")
    e.i(f"s_addc_u32 s{sX+1}, s37, 0")
    e.i(f"s_mov_b32 s{sX+2}, 196608")
    e.i(f"s_mov_b32 s{sX+3}, 0x00020000")
    e.i("s_mul_i32 s51, s48, 12582912")
    e.i("s_mul_i32 s52, s46, 1572864")
    e.i("s_add_u32 s51, s51, s52")
    e.i("s_add_u32 s51, s51, s49")
    e.i(f"s_add_u32 s{sO}, s44, s51")
    e.i(f"s_addc_u32 s{sO+1}, s45, 0")
    e.i(f"s_mov_b32 s{sO+2}, {191*8192+256}")
    e.i(f"s_mov_b32 s{sO+3}, 0x00020000")
    e.i(f"s_lshl_b32 s{sM0}, s{sWave}, 12")
    e.i(f"s_mul_i32 s{sT0}, s2, 5")
    e.i(f"s_lshr_b32 s{sTmp}, s2, 4")
    e.i(f"s_add_u32 s{sT0}, s{sT0}, s{sTmp}")
    e.i(f"s_and_b32 s{sT0}, s{sT0}, 15")
    e.i(f"s_mov_b32 s{sC}, 0x3e0293ee")
    setup_lds_addrs(e, sWave)
    dma_regs(e, sWave, 13, T0 + 7, T0 + 8, wperm=True)
    WE, WO = T0 + 7, T0 + 8
    XA = T0 + 9
    e.i(f"v_mbcnt_lo_u32_b32 v{T0}, -1, 0")
    e.i(f"v_mbcnt_hi_u32_b32 v{T0}, -1, v{T0}")
    e.i(f"v_and_b32 v{T0+1}, 15, v{T0}")
    e.i(f"v_lshrrev_b32 v{T0+2}, 4, v{T0}")
    e.i(f"s_mul_i32 s{sTmp}, s{sWave}, 48")
    e.i(f"v_add_u32 v{T0+1}, s{sTmp}, v{T0+1}")
    e.i(f"v_lshlrev_b32 v{T0+1}, 10, v{T0+1}")
    e.i(f"v_lshl_add_u32 v{XA}, v{T0+2}, 4, v{T0+1}")
    e.i(f"v_add_u32 v{XA+1}, 0x4000, v{XA}")
    e.i(f"v_add_u32 v{XA+2}, 0x8000, v{XA}")
    for r in range(96):
        e.i(f"v_mov_b32 v{ACC+r}, 0")

    vq = VmQ()
    import os
    STAMP = os.environ.get("STAMP")
    nst = [0]

    def stamp():
        if not STAMP:
            return
        k = 60 + 2 * nst[0]
        nst[0] += 1
        e.i(f"s_memrealtime s[{k}:{k+1}]" if STAMP == "2" else f"s_memtime s[{k}:{k+1}]")

    stamp()

    def issue_tile(j):
        slot = j % 4
        e.i(f"s_add_u32 m0, s{sM0}, {slot*16384}")
        if j < 8:
            if os.environ.get("EXP") == "now":
                return
            for i in range(4):
                e.i(f"s_mov_b32 s{sTmp}, {(64*j+8*i)*8192 - 1024*i}")
                e.i(f"buffer_load_dwordx4 v{WE if i%2==0 else WO}, s[{sWq}:{sWq+3}], s{sTmp} offen offset:{1024*i} lds")
        else:
            t = (j - 8) // 2
            srd = sK if (j - 8) % 2 == 0 else sV
            e.i(f"s_add_u32 s{sTmp}, s{sT0}, {t}")
            e.i(f"s_and_b32 s{sTmp}, s{sTmp}, 15")
            e.i(f"s_lshl_b32 s{sTmp}, s{sTmp}, 14")
            for i in range(4):
                e.i(f"buffer_load_dwordx4 v{DE if i%2==0 else DO}, s[{srd}:{srd+3}], s{sTmp} offen offset:{1024*i}{NT} lds")
        vq.issue(("T", j), 4)

    def issue_x(j):
        base = XS + (j % 4) * 24
        if os.environ.get("EXP") == "nox":
            return
        for kc in range(2):
            for qt in range(3):
                b = base + (kc * 3 + qt) * 4
                off = 128 * j + 64 * kc
                e.i(f"buffer_load_dwordx4 v[{b}:{b+3}], v{XA+qt}, s[{sX}:{sX+3}], 0 offen offset:{off}")
        vq.issue(("X", j), 6)

    dma_done = False
    dma_regs(e, sWave, 8, DE, DO)
    for j in range(3):
        issue_tile(j)
        issue_x(j)
    for j in range(8):
        n = vq.wait_n({("T", j), ("X", j)})
        e.i(f"s_waitcnt vmcnt({n})")
        e.i("s_barrier")
        issue_tile(j + 3)
        if j + 3 < 8:
            issue_x(j + 3)
        base = XS + (j % 4) * 24
        pv_step(e, j % 4, lambda kc, qt: base + (kc * 3 + qt) * 4)
    for c in range(4):
        for qt in range(3):
            a = ACC + ((2 * c) * 3 + qt) * 4
            b = ACC + ((2 * c + 1) * 3 + qt) * 4
            q = qf(c, qt)
            e.i(f"v_cvt_pk_bf16_f32 v{q}, v{a}, v{a+1}")
            e.i(f"v_cvt_pk_bf16_f32 v{q+1}, v{a+2}, v{a+3}")
            e.i(f"v_cvt_pk_bf16_f32 v{q+2}, v{b}, v{b+1}")
            e.i(f"v_cvt_pk_bf16_f32 v{q+3}, v{b+2}, v{b+3}")
    for c in range(4):
        for qt in range(3):
            q = qf(c, qt)
            e.i(f"v_permlane32_swap_b32 v{q}, v{q+2}")
            e.i(f"v_permlane32_swap_b32 v{q+1}, v{q+3}")
    for c in range(4):
        for qt in range(3):
            q = qf(c, qt)
            e.i(f"v_permlane16_swap_b32 v{q}, v{q+2}")
            e.i(f"v_permlane16_swap_b32 v{q+1}, v{q+3}")
    import os
    if os.environ.get("DEBUG_Q"):
        OA = T0 + 4
        e.i(f"v_mbcnt_lo_u32_b32 v{T0}, -1, 0")
        e.i(f"v_mbcnt_hi_u32_b32 v{T0}, -1, v{T0}")
        e.i(f"v_and_b32 v{T0+1}, 15, v{T0}")
        e.i(f"v_lshrrev_b32 v{T0+2}, 4, v{T0}")
        e.i(f"s_mul_i32 s{sTmp}, s{sWave}, 48")
        e.i(f"v_add_u32 v{T0+1}, s{sTmp}, v{T0+1}")
        e.i(f"v_lshlrev_b32 v{T0+1}, 13, v{T0+1}")
        e.i(f"v_lshl_add_u32 v{OA}, v{T0+2}, 4, v{T0+1}")
        e.i(f"v_add_u32 v{OA+1}, 0x20000, v{OA}")
        e.i(f"v_add_u32 v{OA+2}, 0x40000, v{OA}")
        for c in range(4):
            for qt in range(3):
                q = qf(c, qt)
                e.i(f"buffer_store_dwordx4 v[{q}:{q+3}], v{OA+qt}, s[{sO}:{sO+3}], 0 offen offset:{64*c}")
        e.i("s_endpgm")
    for r in range(96):
        e.i(f"v_mov_b32 v{ACC+r}, 0")
    for qt in range(3):
        e.i(f"v_mov_b32 v{MC+qt}, 0xf149f2ca")
        e.i(f"v_mov_b32 v{LS+qt}, 0")
    e.i(f"s_mov_b32 s{sKn}, 2")
    e.i(f"s_mov_b32 s{sVn}, 1")
    e.i(f"s_mov_b32 s{sCnt}, 8")
    stamp()
    e.fence()
    e.label("L_attn_loop")

    import os
    EXP = os.environ.get("EXP", "")

    def loop_issue(slot, is_k):
        if EXP == "noload":
            return
        e.i(f"s_add_u32 m0, s{sM0}, {slot*16384}")
        srd = sK if is_k else sV
        sn = sKn if is_k else sVn
        e.i(f"s_add_u32 s{sTmp}, s{sT0}, s{sn}")
        e.i(f"s_and_b32 s{sTmp}, s{sTmp}, 15")
        e.i(f"s_lshl_b32 s{sTmp}, s{sTmp}, 14")
        e.i(f"s_cmp_ge_u32 s{sn}, 16")
        e.i(f"s_cselect_b32 s{sTmp}, 0x40000000, s{sTmp}")
        e.i(f"s_add_u32 s{sn}, s{sn}, 1")
        for i in range(4):
            e.i(f"buffer_load_dwordx4 v{DE if i%2==0 else DO}, s[{srd}:{srd+3}], s{sTmp} offen offset:{1024*i}{NT} lds")

    for half in range(2):
        ks, vs = 2 * half, 2 * half + 1
        e.i("s_waitcnt vmcnt(8)")
        e.i("s_barrier")
        loop_issue((ks + 3) % 4, False)
        if EXP == "nocompute":
            e.i("s_waitcnt vmcnt(8)")
            e.i("s_barrier")
            loop_issue((vs + 3) % 4, True)
            continue
        order = [(kt, c) for kt in range(4) for c in range(4)]
        n = len(order)
        issued = 0

        def kissue(i):
            kt, c = order[i]
            f = fr(i)
            e.i(f"ds_read_b128 v[{f}:{f+3}], v{KA+c} offset:{ks*16384 + kt*4096}")

        while issued < 8:
            kissue(issued)
            issued += 1
        for i in range(n):
            kt, c = order[i]
            e.i(f"s_waitcnt lgkmcnt({issued-i-1})")
            f = fr(i)
            for qt in range(3):
                s = ss(kt, qt)
                q = qf(c, qt)
                cin = "0" if c == 0 else f"v[{s}:{s+3}]"
                e.i(f"v_mfma_f32_16x16x32_bf16 v[{s}:{s+3}], v[{f}:{f+3}], v[{q}:{q+3}], {cin}")
            if issued < n:
                kissue(issued)
                issued += 1
        tm = T0
        tu = T0 + 3
        for qt in range(3):
            vals = [ss(kt, qt) + r for kt in range(4) for r in range(4)]
            e.i(f"v_max3_f32 v{tm+qt}, v{vals[0]}, v{vals[1]}, v{vals[2]}")
            k = 3
            while k < 16:
                v2 = vals[k + 1] if k + 1 < 16 else vals[k]
                e.i(f"v_max3_f32 v{tm+qt}, v{tm+qt}, v{vals[k]}, v{v2}")
                k += 2
        for swap in ("v_permlane32_swap_b32", "v_permlane16_swap_b32"):
            for qt in range(3):
                e.i(f"v_mov_b32 v{tu+qt}, v{tm+qt}")
            for qt in range(3):
                e.i(f"{swap} v{tm+qt}, v{tu+qt}")
            for qt in range(3):
                e.i(f"v_max_f32 v{tm+qt}, v{tm+qt}, v{tu+qt}")
        for qt in range(3):
            e.i(f"v_mul_f32 v{tm+qt}, s{sC}, v{tm+qt}")
        for qt in range(3):
            e.i(f"v_sub_f32 v{tu+qt}, v{tm+qt}, v{MC+qt}")
        e.i(f"v_max3_f32 v{tu}, v{tu}, v{tu+1}, v{tu+2}")
        e.i(f"v_cmp_lt_f32 vcc, 0x41000000, v{tu}")
        e.i("s_nop 4")
        lbl = f"L_attn_nors{half}"
        e.i(f"s_cbranch_vccz {lbl}")
        for qt in range(3):
            e.i(f"v_max_f32 v{tm+qt}, v{tm+qt}, v{MC+qt}")
        for qt in range(3):
            e.i(f"v_sub_f32 v{tu+qt}, v{MC+qt}, v{tm+qt}")
        for qt in range(3):
            e.i(f"v_exp_f32 v{tu+qt}, v{tu+qt}")
        for qt in range(3):
            e.i(f"v_mov_b32 v{MC+qt}, v{tm+qt}")
        for qt in range(3):
            e.i(f"v_mul_f32 v{LS+qt}, v{LS+qt}, v{tu+qt}")
        for dt in range(8):
            for qt in range(3):
                for r in range(4):
                    a = ACC + (dt * 3 + qt) * 4 + r
                    e.i(f"v_mul_f32 v{a}, v{a}, v{tu+qt}")
        e.label(lbl)
        e.fence()
        for qt in range(3):
            for kt in range(4):
                for r in range(4):
                    s = ss(kt, qt) + r
                    e.i(f"v_fma_f32 v{s}, v{s}, s{sC}, -v{MC+qt}")
        for kt in range(4):
            for r in range(4):
                for qt in range(3):
                    s = ss(kt, qt) + r
                    e.i(f"v_exp_f32 v{s}, v{s}")
        for kt in range(4):
            for r in range(4):
                for qt in range(3):
                    s = ss(kt, qt) + r
                    e.i(f"v_add_f32 v{LS+qt}, v{LS+qt}, v{s}")
        for kc in range(2):
            for qt in range(3):
                a = ss(2 * kc, qt)
                b = ss(2 * kc + 1, qt)
                e.i(f"v_cvt_pk_bf16_f32 v{a}, v{a}, v{a+1}")
                e.i(f"v_cvt_pk_bf16_f32 v{a+1}, v{a+2}, v{a+3}")
                e.i(f"v_cvt_pk_bf16_f32 v{a+2}, v{b}, v{b+1}")
                e.i(f"v_cvt_pk_bf16_f32 v{a+3}, v{b+2}, v{b+3}")
        e.i("s_waitcnt vmcnt(8)")
        e.i("s_barrier")
        loop_issue((vs + 3) % 4, True)
        pv_step(e, vs, lambda kc, qt: ss(2 * kc, qt))
    e.i(f"s_sub_u32 s{sCnt}, s{sCnt}, 1")
    e.i(f"s_cmp_lg_u32 s{sCnt}, 0")
    e.i("s_cbranch_scc1 L_attn_loop")
    e.fence()
    stamp()
    tu = T0
    for swap in ("v_permlane32_swap_b32", "v_permlane16_swap_b32"):
        for qt in range(3):
            e.i(f"v_mov_b32 v{tu+qt}, v{LS+qt}")
        for qt in range(3):
            e.i(f"{swap} v{LS+qt}, v{tu+qt}")
        for qt in range(3):
            e.i(f"v_add_f32 v{LS+qt}, v{LS+qt}, v{tu+qt}")
    for qt in range(3):
        e.i(f"v_rcp_f32 v{LS+qt}, v{LS+qt}")
    for dt in range(8):
        for qt in range(3):
            for r in range(4):
                a = ACC + (dt * 3 + qt) * 4 + r
                e.i(f"v_mul_f32 v{a}, v{a}, v{LS+qt}")
    OA = T0 + 4
    e.i(f"v_mbcnt_lo_u32_b32 v{T0}, -1, 0")
    e.i(f"v_mbcnt_hi_u32_b32 v{T0}, -1, v{T0}")
    e.i(f"v_and_b32 v{T0+1}, 15, v{T0}")
    e.i(f"v_lshrrev_b32 v{T0+2}, 4, v{T0}")
    e.i(f"s_mul_i32 s{sTmp}, s{sWave}, 48")
    e.i(f"v_add_u32 v{T0+1}, s{sTmp}, v{T0+1}")
    e.i(f"v_lshlrev_b32 v{T0+1}, 13, v{T0+1}")
    e.i(f"v_lshl_add_u32 v{OA}, v{T0+2}, 4, v{T0+1}")
    e.i(f"v_add_u32 v{OA+1}, 0x20000, v{OA}")
    e.i(f"v_add_u32 v{OA+2}, 0x40000, v{OA}")
    for c in range(4):
        for qt in range(3):
            a = ACC + ((2 * c) * 3 + qt) * 4
            b = ACC + ((2 * c + 1) * 3 + qt) * 4
            q = qf(c, qt)
            e.i(f"v_cvt_pk_bf16_f32 v{q}, v{a}, v{a+1}")
            e.i(f"v_cvt_pk_bf16_f32 v{q+1}, v{a+2}, v{a+3}")
            e.i(f"v_cvt_pk_bf16_f32 v{q+2}, v{b}, v{b+1}")
            e.i(f"v_cvt_pk_bf16_f32 v{q+3}, v{b+2}, v{b+3}")
            e.i(f"buffer_store_dwordx4 v[{q}:{q+3}], v{OA+qt}, s[{sO}:{sO+3}], 0 offen offset:{64*c}")
    if STAMP:
        stamp()
        e.i("s_waitcnt lgkmcnt(0)")
        e.i(f"s_mov_b32 s{sO+2}, 0x7fffffff")
        e.i("s_lshl_b32 s3, s2, 6")
        e.i("s_add_u32 s3, s3, 0xc800000")
        e.i("s_sub_u32 s3, s3, s51")
        for k in range(nst[0]):
            e.i(f"v_mov_b32 v{2*k}, s{60+2*k}")
            e.i(f"v_mov_b32 v{2*k+1}, s{61+2*k}")
        e.i("v_mov_b32 v20, 0")
        e.i(f"buffer_store_dwordx4 v[0:3], v20, s[{sO}:{sO+3}], s3 offen")
        e.i(f"buffer_store_dwordx4 v[4:7], v20, s[{sO}:{sO+3}], s3 offen offset:16")
    e.label("L_attn_end")
    e.i("s_endpgm")


def kernel_oproj(e):
    KN = "oproj_kernel"
    e.raw(f".globl {KN}\n.p2align 8\n.type {KN},@function\n{KN}:")
    sWo, sOi, sP = 8, 12, 16
    sWave, sM0, sTmp, sSo = 28, 29, 32, 33
    e.i("s_cmp_ge_u32 s2, 256")
    e.i("s_cbranch_scc1 L_oproj_end")
    e.i("s_and_b32 s40, s2, 3")
    e.i("s_lshr_b32 s41, s2, 2")
    e.i("s_and_b32 s41, s41, 7")
    e.i("s_lshr_b32 s42, s2, 5")
    e.i("s_and_b32 s42, s42, 1")
    e.i("s_lshr_b32 s43, s2, 6")
    e.i("s_mul_i32 s3, s42, 40")
    e.i("s_add_u32 s4, s0, s3")
    e.i("s_addc_u32 s5, s1, 0")
    e.i("s_load_dwordx2 s[36:37], s[4:5], 32")
    e.i("s_load_dwordx2 s[44:45], s[0:1], 96")
    e.i("v_lshrrev_b32 v1, 6, v0")
    e.i("s_nop 0")
    e.i("v_readfirstlane_b32 s28, v1")
    e.i("s_waitcnt lgkmcnt(0)")
    e.i("s_lshl_b32 s46, s40, 8")
    e.i("s_lshl_b32 s47, s43, 20")
    e.i("s_add_u32 s46, s46, s47")
    e.i(f"s_add_u32 s{sWo}, s36, s46")
    e.i(f"s_addc_u32 s{sWo+1}, s37, 0")
    e.i(f"s_mov_b32 s{sWo+2}, {1023*1024+256}")
    e.i(f"s_mov_b32 s{sWo+3}, 0x00020000")
    e.i("s_mul_i32 s46, s42, 12582912")
    e.i("s_mul_i32 s47, s41, 1572864")
    e.i("s_add_u32 s46, s46, s47")
    e.i("s_lshl_b32 s47, s43, 11")
    e.i("s_add_u32 s46, s46, s47")
    e.i(f"s_add_u32 s{sOi}, s44, s46")
    e.i(f"s_addc_u32 s{sOi+1}, s45, 0")
    e.i(f"s_mov_b32 s{sOi+2}, {191*8192+2048}")
    e.i(f"s_mov_b32 s{sOi+3}, 0x00020000")
    e.i("s_lshl_b32 s46, s43, 1")
    e.i("s_add_u32 s46, s46, s42")
    e.i("s_mul_i32 s46, s46, 1536")
    e.i("s_mul_i32 s47, s41, 192")
    e.i("s_add_u32 s46, s46, s47")
    e.i("s_lshl_b32 s46, s46, 11")
    e.i("s_lshl_b32 s47, s40, 9")
    e.i("s_add_u32 s46, s46, s47")
    e.i("s_add_u32 s46, s46, 0x2000000")
    e.i(f"s_add_u32 s{sP}, s44, s46")
    e.i(f"s_addc_u32 s{sP+1}, s45, 0")
    e.i(f"s_mov_b32 s{sP+2}, {191*2048+512}")
    e.i(f"s_mov_b32 s{sP+3}, 0x00020000")
    e.i(f"s_lshl_b32 s{sM0}, s{sWave}, 12")
    setup_lds_addrs(e, sWave)
    dma_regs(e, sWave, 10, DE, DO)
    XA = T0 + 8
    e.i(f"v_mbcnt_lo_u32_b32 v{T0}, -1, 0")
    e.i(f"v_mbcnt_hi_u32_b32 v{T0}, -1, v{T0}")
    e.i(f"v_and_b32 v{T0+1}, 15, v{T0}")
    e.i(f"v_lshrrev_b32 v{T0+2}, 4, v{T0}")
    e.i(f"s_mul_i32 s{sTmp}, s{sWave}, 48")
    e.i(f"v_add_u32 v{T0+1}, s{sTmp}, v{T0+1}")
    e.i(f"v_lshlrev_b32 v{T0+1}, 13, v{T0+1}")
    e.i(f"v_lshl_add_u32 v{XA}, v{T0+2}, 4, v{T0+1}")
    e.i(f"v_add_u32 v{XA+1}, 0x20000, v{XA}")
    e.i(f"v_add_u32 v{XA+2}, 0x40000, v{XA}")
    for r in range(96):
        e.i(f"v_mov_b32 v{ACC+r}, 0")
    vq = VmQ()
    NT = 16

    def issue_tile(j):
        slot = j % 4
        e.i(f"s_add_u32 m0, s{sM0}, {slot*16384}")
        for i in range(4):
            e.i(f"s_mov_b32 s{sTmp}, {(64*j+4*i)*1024 - 1024*i}")
            e.i(f"buffer_load_dwordx4 v{DE if i%2==0 else DO}, s[{sWo}:{sWo+3}], s{sTmp} offen offset:{1024*i} lds")
        vq.issue(("T", j), 4)

    def issue_x(j):
        base = XS + (j % 4) * 24
        for kc in range(2):
            for qt in range(3):
                b = base + (kc * 3 + qt) * 4
                e.i(f"buffer_load_dwordx4 v[{b}:{b+3}], v{XA+qt}, s[{sOi}:{sOi+3}], 0 offen offset:{128*j+64*kc}")
        vq.issue(("X", j), 6)

    for j in range(3):
        issue_tile(j)
        issue_x(j)
    for j in range(NT):
        n = vq.wait_n({("T", j), ("X", j)})
        e.i(f"s_waitcnt vmcnt({n})")
        e.i("s_barrier")
        if j + 3 < NT:
            issue_tile(j + 3)
            issue_x(j + 3)
        base = XS + (j % 4) * 24
        pv_step(e, j % 4, lambda kc, qt: base + (kc * 3 + qt) * 4)
    OA = T0 + 4
    e.i(f"v_mbcnt_lo_u32_b32 v{T0}, -1, 0")
    e.i(f"v_mbcnt_hi_u32_b32 v{T0}, -1, v{T0}")
    e.i(f"v_and_b32 v{T0+1}, 15, v{T0}")
    e.i(f"v_lshrrev_b32 v{T0+2}, 4, v{T0}")
    e.i(f"s_mul_i32 s{sTmp}, s{sWave}, 48")
    e.i(f"v_add_u32 v{T0+1}, s{sTmp}, v{T0+1}")
    e.i(f"v_lshlrev_b32 v{T0+1}, 11, v{T0+1}")
    e.i(f"v_lshl_add_u32 v{OA}, v{T0+2}, 4, v{T0+1}")
    e.i(f"v_add_u32 v{OA+1}, 0x8000, v{OA}")
    e.i(f"v_add_u32 v{OA+2}, 0x10000, v{OA}")
    for nt in range(8):
        for qt in range(3):
            a = ACC + (nt * 3 + qt) * 4
            e.i(f"buffer_store_dwordx4 v[{a}:{a+3}], v{OA+qt}, s[{sP}:{sP+3}], 0 offen offset:{64*nt}")
    e.label("L_oproj_end")
    e.i("s_endpgm")


def kernel_reduce(e):
    KN = "reduce_kernel"
    e.raw(f".globl {KN}\n.p2align 8\n.type {KN},@function\n{KN}:")
    e.i("s_cmp_ge_u32 s2, 768")
    e.i("s_cbranch_scc1 L_red_end")
    e.i("s_load_dwordx2 s[4:5], s[0:1], 80")
    e.i("s_load_dwordx2 s[6:7], s[0:1], 96")
    e.i("s_lshl_b32 s3, s2, 8")
    e.i("v_add_u32 v1, s3, v0")
    e.i("s_waitcnt lgkmcnt(0)")
    e.i("s_add_u32 s8, s6, 0x2000000")
    e.i("s_addc_u32 s9, s7, 0")
    e.i(f"s_mov_b32 s10, {4*2*1536*2048}")
    e.i("s_mov_b32 s11, 0x00020000")
    e.i("s_mov_b32 s12, s4")
    e.i("s_mov_b32 s13, s5")
    e.i(f"s_mov_b32 s14, {1536*2048}")
    e.i("s_mov_b32 s15, 0x00020000")
    e.i("v_lshlrev_b32 v2, 5, v1")
    e.i("s_mov_b32 s16, 6291456")
    for sk in range(4):
        e.i(f"s_mul_i32 s17, s16, {sk}")
        e.i(f"buffer_load_dwordx4 v[{8+8*sk}:{11+8*sk}], v2, s[8:11], s17 offen")
        e.i(f"buffer_load_dwordx4 v[{12+8*sk}:{15+8*sk}], v2, s[8:11], s17 offen offset:16")
    e.i("v_cmp_le_u32 vcc, 98304, v1")
    e.i("v_cndmask_b32 v3, 0, 1, vcc")
    e.i("v_mul_u32_u24 v4, 98304, v3")
    e.i("v_sub_u32 v4, v1, v4")
    e.i("v_lshrrev_b32 v5, 6, v4")
    e.i("v_and_b32 v6, 63, v4")
    e.i("v_lshlrev_b32 v5, 11, v5")
    e.i("v_lshl_add_u32 v5, v3, 10, v5")
    e.i("v_lshl_add_u32 v5, v6, 4, v5")
    e.i("s_waitcnt vmcnt(0)")
    for sk in range(1, 4):
        for k in range(8):
            e.i(f"v_add_f32 v{8+k}, v{8+k}, v{8+8*sk+k}")
    e.i("v_cvt_pk_bf16_f32 v40, v8, v9")
    e.i("v_cvt_pk_bf16_f32 v41, v10, v11")
    e.i("v_cvt_pk_bf16_f32 v42, v12, v13")
    e.i("v_cvt_pk_bf16_f32 v43, v14, v15")
    e.i("buffer_store_dwordx4 v[40:43], v5, s[12:15], 0 offen")
    e.label("L_red_end")
    e.i("s_endpgm")


def desc(name, vgpr, sgpr=64):
    acc_off = (vgpr + 3) // 4 * 4
    return f""".amdhsa_kernel {name}
  .amdhsa_next_free_vgpr {vgpr}
  .amdhsa_next_free_sgpr {sgpr}
  .amdhsa_accum_offset {acc_off}
  .amdhsa_group_segment_fixed_size 0
  .amdhsa_kernarg_size 104
  .amdhsa_user_sgpr_count 2
  .amdhsa_user_sgpr_kernarg_segment_ptr 1
  .amdhsa_system_sgpr_workgroup_id_x 1
.end_amdhsa_kernel
"""


def main():
    e = Em()
    hdr = """; fused MHA block x2: attn (q-proj + flash attention, o -> ws) ; oproj (split-K 4 partials -> ws) ; reduce
; @launch kernel=attn_kernel grid=(512,1,1) block=(256,1,1) lds=65536
; @launch kernel=oproj_kernel grid=(256,1,1) block=(256,1,1) lds=65536
; @launch kernel=reduce_kernel grid=(768,1,1) block=(256,1,1) lds=0
.amdgcn_target "amdgcn-amd-amdhsa--gfx950"
.text"""
    e.raw(hdr)
    kernel_attn(e)
    e.hist = []
    kernel_oproj(e)
    e.hist = []
    kernel_reduce(e)
    e.raw('.section .rodata,"a"\n.p2align 6')
    e.raw(desc("attn_kernel", 256))
    e.raw(".p2align 6")
    e.raw(desc("oproj_kernel", 256))
    e.raw(".p2align 6")
    e.raw(desc("reduce_kernel", 48, 32))
    open(OUT, "w").write("\n".join(e.lines) + "\n")
    print("wrote", OUT, len(e.lines), "lines")


if __name__ == "__main__":
    main()
```

```python
import re
import sys

import os
NT = "" if os.environ.get("NONT") else " nt"
WNT = " nt" if os.environ.get("WNT") else ""
XNT = " nt" if os.environ.get("XNT") else ""
TOUCH = os.environ.get("TOUCH")
NAME = "concat_heads__mha_block_cached__gqa_block_cached__near_ridge"
OUT = f"cdna_kernels/{NAME}.s"

VRE = re.compile(r"\bv\[(\d+):(\d+)\]|\bv(\d+)\b")


def regs_of(tok):
    out = set()
    for m in VRE.finditer(tok):
        if m.group(3) is not None:
            out.add(int(m.group(3)))
        else:
            out.update(range(int(m.group(1)), int(m.group(2)) + 1))
    return out


class Em:
    def __init__(self):
        self.lines = []
        self.hist = []

    def raw(self, t):
        self.lines.append(t)

    def label(self, name):
        self.lines.append(f"{name}:")

    def fence(self):
        self.i("s_nop 7")

    def i(self, text):
        text = text.strip()
        mn = text.split()[0]
        ops = text[len(mn):].strip()
        opl = [o.strip() for o in ops.split(",")] if ops else []
        kind = "other"
        rd, wr, srcc = set(), set(), set()
        if mn.startswith("v_mfma"):
            kind = "mfma"
            wr = regs_of(opl[0])
            rd = regs_of(opl[1]) | regs_of(opl[2])
            srcc = regs_of(opl[3])
        elif mn.startswith("v_permlane"):
            kind = "perm"
            wr = regs_of(opl[0]) | regs_of(opl[1])
            rd = set(wr)
        elif mn.startswith("v_cmp") or mn.startswith("v_readfirstlane") or mn.startswith("v_readlane"):
            kind = "valu"
            for o in opl[1:]:
                rd |= regs_of(o)
        elif mn.startswith("v_"):
            kind = "trans" if re.match(r"v_(exp|log|rcp|rsq|sqrt|sin|cos)_", mn) else "valu"
            wr = regs_of(opl[0])
            for o in opl[1:]:
                rd |= regs_of(o)
            if mn.startswith("v_fmac") or mn.startswith("v_pk_fmac"):
                rd |= wr
        elif mn.startswith("ds_read") or (mn.startswith("buffer_load") and " lds" not in text) or mn.startswith("global_load"):
            kind = "mem"
            wr = regs_of(opl[0])
            for o in opl[1:]:
                rd |= regs_of(o)
        elif mn.startswith("ds_write") or mn.startswith("buffer_store") or mn.startswith("global_store") or mn.startswith("buffer_load"):
            kind = "store" if "store" in mn else "mem"
            for o in opl:
                rd |= regs_of(o)
        elif mn == "s_nop":
            kind = "nop"
        need = self._need(kind, rd, wr, srcc)
        if need > 0:
            self._push("s_nop %d" % (need - 1), "nop", set(), set(), set(), need)
        ws = 1
        if kind == "nop":
            ws = int(ops) + 1
        self._push(text, kind, rd, wr, srcc, ws)

    def _push(self, text, kind, rd, wr, srcc, ws):
        self.lines.append("    " + text)
        self.hist.append((kind, rd, wr, srcc, ws))
        if len(self.hist) > 24:
            self.hist.pop(0)

    def _need(self, kind, rd, wr, srcc):
        need = 0
        dist = 0
        for (pk, prd, pwr, psrcc, pws) in reversed(self.hist):
            req = 0
            if pk == "mfma":
                if kind == "mfma":
                    if rd & pwr:
                        req = 8
                    elif srcc & pwr:
                        req = 0 if srcc == pwr else 6
                    elif wr & pwr:
                        req = 8
                elif kind in ("valu", "trans", "perm", "mem", "store"):
                    if (rd | wr) & pwr:
                        req = 8
                    elif kind in ("valu", "trans", "perm") and (wr & psrcc):
                        req = 3
            elif pk in ("valu", "trans", "perm"):
                if kind == "mfma" and ((rd | srcc) & pwr):
                    req = 2
                elif kind == "perm" and (rd & pwr):
                    req = 2
                elif pk == "trans" and kind in ("valu", "perm") and (rd & pwr):
                    req = 1
            elif pk == "store":
                if kind in ("valu", "trans", "perm") and (wr & prd):
                    req = 2
                elif kind == "mem" and (wr & prd):
                    req = 1
            if req > dist:
                need = max(need, req - dist)
            dist += pws
            if dist >= 12:
                break
        return need


class VmQ:
    def __init__(self):
        self.q = []

    def issue(self, tag, n=1):
        self.q += [tag] * n

    def wait_n(self, tags):
        last = -1
        for idx, t in enumerate(self.q):
            if t in tags:
                last = idx
        n = len(self.q) - 1 - last
        self.q = self.q[last + 1:]
        return n


ACC = 0
QF = 96
SS = 144
XS = 96
FR = 192
KA = 224
VA = 228
DE = 236
DO = 237
MC = 238
LS = 241
T0 = 244


def acc(dt, qt):
    b = ACC + (dt * 3 + qt) * 4
    return f"v[{b}:{b+3}]"


def qf(c, qt):
    b = QF + (c * 3 + qt) * 4
    return b


def ss(kt, qt):
    return SS + (kt * 3 + qt) * 4


def fr(i):
    b = FR + (i % 8) * 4
    return b


def pv_step(e, slot, bf, nfl=7, va=None, boff=None):
    order = [(kc, dt) for kc in range(2) for dt in range(8)]
    n = len(order)
    issued = 0

    def issue(i):
        kc, dt = order[i]
        f = fr(i)
        off = (slot * 16384 if boff is None else boff) + kc * 8192
        vv = VA if va is None else va
        e.i(f"ds_read_b64_tr_b16 v[{f}:{f+1}], v{vv+dt} offset:{off}")
        e.i(f"ds_read_b64_tr_b16 v[{f+2}:{f+3}], v{vv+dt} offset:{off+4096}")

    while issued < min(nfl, n):
        issue(issued)
        issued += 1
    for i in range(n):
        kc, dt = order[i]
        outstanding = (issued - i - 1) * 2
        e.i(f"s_waitcnt lgkmcnt({outstanding})")
        f = fr(i)
        for qt in range(3):
            b = bf(kc, qt)
            e.i(f"v_mfma_f32_16x16x32_bf16 {acc(dt,qt)}, v[{f}:{f+3}], v[{b}:{b+3}], {acc(dt,qt)}")
        if issued < n:
            issue(issued)
            issued += 1


def setup_lds_addrs(e, sW):
    t = T0
    e.i(f"v_mbcnt_lo_u32_b32 v{t}, -1, 0")
    e.i(f"v_mbcnt_hi_u32_b32 v{t}, -1, v{t}")
    e.i(f"v_lshrrev_b32 v{t+1}, 4, v{t}")
    e.i(f"v_and_b32 v{t+2}, 15, v{t}")
    e.i(f"v_and_b32 v{t+3}, 7, v{t+2}")
    e.i(f"v_lshlrev_b32 v{t+3}, 1, v{t+3}")
    for c in range(4):
        e.i(f"v_add_u32 v{t+4}, {4*c}, v{t+1}")
        e.i(f"v_xor_b32 v{t+4}, v{t+4}, v{t+3}")
        e.i(f"v_lshlrev_b32 v{t+4}, 4, v{t+4}")
        e.i(f"v_lshl_add_u32 v{KA+c}, v{t+2}, 8, v{t+4}")
    e.i(f"v_lshrrev_b32 v{t+3}, 2, v{t+2}")
    e.i(f"v_lshl_add_u32 v{t+3}, v{t+1}, 2, v{t+3}")
    e.i(f"v_and_b32 v{t+4}, 7, v{t+3}")
    e.i(f"v_lshlrev_b32 v{t+4}, 1, v{t+4}")
    e.i(f"v_and_b32 v{t+5}, 3, v{t+2}")
    e.i(f"v_lshrrev_b32 v{t+6}, 1, v{t+5}")
    e.i(f"v_and_b32 v{t+5}, 1, v{t+5}")
    e.i(f"v_lshlrev_b32 v{t+5}, 3, v{t+5}")
    e.i(f"v_lshl_add_u32 v{t+5}, v{t+3}, 8, v{t+5}")
    for dt in range(8):
        e.i(f"v_add_u32 v{t+7}, {2*dt}, v{t+6}")
        e.i(f"v_xor_b32 v{t+7}, v{t+7}, v{t+4}")
        e.i(f"v_lshl_add_u32 v{VA+dt}, v{t+7}, 4, v{t+5}")


def dma_regs(e, sW, stride_shift, de, do, wperm=False):
    t = T0
    e.i(f"v_mbcnt_lo_u32_b32 v{t}, -1, 0")
    e.i(f"v_mbcnt_hi_u32_b32 v{t}, -1, v{t}")
    e.i(f"v_lshrrev_b32 v{t+1}, 4, v{t}")
    e.i(f"v_and_b32 v{t+2}, 15, v{t}")
    e.i(f"v_lshlrev_b32 v{t+3}, 1, v{t+1}")
    e.i(f"v_xor_b32 v{t+4}, v{t+2}, v{t+3}")
    e.i(f"v_lshlrev_b32 v{t+4}, 4, v{t+4}")
    e.i(f"v_add_u32 v{t+3}, 8, v{t+3}")
    e.i(f"v_xor_b32 v{t+5}, v{t+2}, v{t+3}")
    e.i(f"v_lshlrev_b32 v{t+5}, 4, v{t+5}")
    if wperm:
        e.i(f"s_lshr_b32 s55, s{sW}, 1")
        e.i(f"s_lshl_b32 s55, s55, 5")
        e.i(f"s_and_b32 s56, s{sW}, 1")
        e.i(f"s_lshl_b32 s56, s56, 2")
        e.i(f"s_add_u32 s55, s55, s56")
        e.i(f"v_add_u32 v{t+1}, s55, v{t+1}")
    else:
        e.i(f"v_lshl_add_u32 v{t+1}, s{sW}, 4, v{t+1}")
    e.i(f"v_lshlrev_b32 v{t+1}, {stride_shift}, v{t+1}")
    e.i(f"v_add_u32 v{de}, v{t+1}, v{t+4}")
    e.i(f"v_add_u32 v{do}, v{t+1}, v{t+5}")


def kernel_attn(e):
    KN = "attn_kernel"
    e.raw(f".globl {KN}\n.p2align 8\n.type {KN},@function\n{KN}:")
    sK, sV, sWq, sX, sO = 8, 12, 16, 20, 24
    sWave, sM0, sKoff, sVoff, sTmp, sC, sCnt, sT0, sKn, sVn = 28, 29, 30, 31, 32, 33, 34, 35, 53, 54
    e.i("s_cmp_ge_u32 s2, 512")
    e.i("s_cbranch_scc1 L_attn_end")
    e.i("s_lshr_b32 s3, s2, 8")
    e.i("s_mul_i32 s3, s3, 40")
    e.i("s_add_u32 s4, s0, s3")
    e.i("s_addc_u32 s5, s1, 0")
    e.i("s_load_dwordx8 s[36:43], s[4:5], 0")
    e.i("s_load_dwordx2 s[44:45], s[0:1], 96")
    e.i("v_lshrrev_b32 v1, 6, v0")
    e.i("s_nop 0")
    e.i("v_readfirstlane_b32 s28, v1")
    e.i("s_and_b32 s6, s2, 255")
    e.i("s_lshl_b32 s7, s6, 18")
    e.i("s_lshr_b32 s46, s6, 5")
    e.i("s_and_b32 s47, s6, 31")
    e.i("s_lshr_b32 s48, s2, 8")
    e.i("s_waitcnt lgkmcnt(0)")
    e.i(f"s_add_u32 s{sK}, s38, s7")
    e.i(f"s_addc_u32 s{sK+1}, s39, 0")
    e.i(f"s_mov_b32 s{sK+2}, 262144")
    e.i(f"s_mov_b32 s{sK+3}, 0x00020000")
    e.i(f"s_add_u32 s{sV}, s40, s7")
    e.i(f"s_addc_u32 s{sV+1}, s41, 0")
    e.i(f"s_mov_b32 s{sV+2}, 262144")
    e.i(f"s_mov_b32 s{sV+3}, 0x00020000")
    e.i("s_lshl_b32 s49, s47, 8")
    e.i(f"s_add_u32 s{sWq}, s42, s49")
    e.i(f"s_addc_u32 s{sWq+1}, s43, 0")
    e.i(f"s_mov_b32 s{sWq+2}, {511*8192+256}")
    e.i(f"s_mov_b32 s{sWq+3}, 0x00020000")
    e.i("s_mul_i32 s50, s46, 196608")
    e.i(f"s_add_u32 s{sX}, s36, s50")
    e.i(f"s_addc_u32 s{sX+1}, s37, 0")
    e.i(f"s_mov_b32 s{sX+2}, 196608")
    e.i(f"s_mov_b32 s{sX+3}, 0x00020000")
    e.i("s_mul_i32 s51, s48, 12582912")
    e.i("s_mul_i32 s52, s46, 1572864")
    e.i("s_add_u32 s51, s51, s52")
    e.i("s_lshl_b32 s52, s47, 12")
    e.i("s_add_u32 s51, s51, s52")
    e.i(f"s_add_u32 s{sO}, s44, s51")
    e.i(f"s_addc_u32 s{sO+1}, s45, 0")
    e.i(f"s_mov_b32 s{sO+2}, {11*131072+4096}")
    e.i(f"s_mov_b32 s{sO+3}, 0x00020000")
    e.i(f"s_lshl_b32 s{sM0}, s{sWave}, 12")
    e.i(f"s_mul_i32 s{sT0}, s2, 5")
    e.i(f"s_lshr_b32 s{sTmp}, s2, 4")
    e.i(f"s_add_u32 s{sT0}, s{sT0}, s{sTmp}")
    e.i(f"s_and_b32 s{sT0}, s{sT0}, 15")
    e.i(f"s_mov_b32 s{sC}, 0x3e0293ee")
    e.i("s_lshr_b32 s58, s2, 3")
    e.i("s_and_b32 s58, s58, 7")
    setup_lds_addrs(e, sWave)
    dma_regs(e, sWave, 13, T0 + 7, T0 + 8, wperm=True)
    WE, WO = T0 + 7, T0 + 8
    XA = T0 + 9
    e.i(f"v_mbcnt_lo_u32_b32 v{T0}, -1, 0")
    e.i(f"v_mbcnt_hi_u32_b32 v{T0}, -1, v{T0}")
    e.i(f"v_and_b32 v{T0+1}, 15, v{T0}")
    e.i(f"v_lshrrev_b32 v{T0+2}, 4, v{T0}")
    e.i(f"s_mul_i32 s{sTmp}, s{sWave}, 48")
    e.i(f"v_add_u32 v{T0+1}, s{sTmp}, v{T0+1}")
    e.i(f"v_lshlrev_b32 v{T0+1}, 10, v{T0+1}")
    e.i(f"v_lshl_add_u32 v{XA}, v{T0+2}, 4, v{T0+1}")
    e.i(f"v_add_u32 v{XA+1}, 0x4000, v{XA}")
    e.i(f"v_add_u32 v{XA+2}, 0x8000, v{XA}")
    for r in range(96):
        e.i(f"v_mov_b32 v{ACC+r}, 0")

    vq = VmQ()
    import os
    STAMP = os.environ.get("STAMP")
    nst = [0]

    def stamp():
        if not STAMP:
            return
        k = 60 + 2 * nst[0]
        nst[0] += 1
        e.i(f"s_memrealtime s[{k}:{k+1}]" if STAMP == "2" else f"s_memtime s[{k}:{k+1}]")

    stamp()

    def issue_tile(j):
        slot = j % 4
        e.i(f"s_add_u32 m0, s{sM0}, {slot*16384}")
        if j < 8:
            if os.environ.get("EXP") == "now":
                return
            e.i(f"s_add_u32 s57, s58, {j}")
            e.i(f"s_and_b32 s57, s57, 7")
            e.i(f"s_lshl_b32 s57, s57, 19")
            for i in range(4):
                e.i(f"s_add_u32 s{sTmp}, s57, {8*i*8192 - 1024*i}")
                e.i(f"buffer_load_dwordx4 v{WE if i%2==0 else WO}, s[{sWq}:{sWq+3}], s{sTmp} offen offset:{1024*i}{WNT} lds")
        else:
            t = (j - 8) // 2
            srd = sK if (j - 8) % 2 == 0 else sV
            e.i(f"s_add_u32 s{sTmp}, s{sT0}, {t}")
            e.i(f"s_and_b32 s{sTmp}, s{sTmp}, 15")
            e.i(f"s_lshl_b32 s{sTmp}, s{sTmp}, 14")
            for i in range(4):
                e.i(f"buffer_load_dwordx4 v{DE if i%2==0 else DO}, s[{srd}:{srd+3}], s{sTmp} offen offset:{1024*i}{NT} lds")
        vq.issue(("T", j), 4)

    def issue_x(j):
        base = XS + (j % 4) * 24
        if os.environ.get("EXP") == "nox":
            return
        e.i(f"s_add_u32 s57, s58, {j}")
        e.i(f"s_and_b32 s57, s57, 7")
        e.i(f"s_lshl_b32 s57, s57, 7")
        for kc in range(2):
            for qt in range(3):
                b = base + (kc * 3 + qt) * 4
                off = 64 * kc
                e.i(f"buffer_load_dwordx4 v[{b}:{b+3}], v{XA+qt}, s[{sX}:{sX+3}], s57 offen offset:{off}{XNT}")
        vq.issue(("X", j), 6)

    dma_done = False
    dma_regs(e, sWave, 8, DE, DO)
    if TOUCH:
        tt = FR
        e.i(f"v_mbcnt_lo_u32_b32 v{tt+20}, -1, 0")
        e.i(f"v_mbcnt_hi_u32_b32 v{tt+20}, -1, v{tt+20}")
        e.i(f"v_lshl_add_u32 v{tt+20}, s{sWave}, 6, v{tt+20}")
        e.i(f"v_lshlrev_b32 v{tt}, 7, v{tt+20}")
        for k in range(6):
            e.i(f"buffer_load_dword v{tt+2+k}, v{tt}, s[{sX}:{sX+3}], 0 offen offset:0" if k == 0 else
                f"buffer_load_dword v{tt+2+k}, v{tt}, s[{sX}:{sX+3}], s{sTmp} offen")
            e.i(f"s_mov_b32 s{sTmp}, {32768*(k+1)}")
        e.i(f"v_lshrrev_b32 v{tt+1}, 1, v{tt+20}")
        e.i(f"v_lshlrev_b32 v{tt+1}, 13, v{tt+1}")
        e.i(f"v_and_b32 v{tt+8}, 1, v{tt+20}")
        e.i(f"v_lshl_add_u32 v{tt+1}, v{tt+8}, 7, v{tt+1}")
        for k in range(4):
            e.i(f"s_mov_b32 s{sTmp}, {128*8192*k}")
            e.i(f"buffer_load_dword v{tt+9+k}, v{tt+1}, s[{sWq}:{sWq+3}], s{sTmp} offen")
        vq.issue(("P", 0), 10)
    for j in range(3):
        issue_tile(j)
        issue_x(j)
    for j in range(8):
        n = vq.wait_n({("T", j), ("X", j)})
        e.i(f"s_waitcnt vmcnt({n})")
        e.i("s_barrier")
        issue_tile(j + 3)
        if j + 3 < 8:
            issue_x(j + 3)
        base = XS + (j % 4) * 24
        pv_step(e, j % 4, lambda kc, qt: base + (kc * 3 + qt) * 4)
    for c in range(4):
        for qt in range(3):
            a = ACC + ((2 * c) * 3 + qt) * 4
            b = ACC + ((2 * c + 1) * 3 + qt) * 4
            q = qf(c, qt)
            e.i(f"v_cvt_pk_bf16_f32 v{q}, v{a}, v{a+1}")
            e.i(f"v_cvt_pk_bf16_f32 v{q+1}, v{a+2}, v{a+3}")
            e.i(f"v_cvt_pk_bf16_f32 v{q+2}, v{b}, v{b+1}")
            e.i(f"v_cvt_pk_bf16_f32 v{q+3}, v{b+2}, v{b+3}")
    for c in range(4):
        for qt in range(3):
            q = qf(c, qt)
            e.i(f"v_permlane32_swap_b32 v{q}, v{q+2}")
            e.i(f"v_permlane32_swap_b32 v{q+1}, v{q+3}")
    for c in range(4):
        for qt in range(3):
            q = qf(c, qt)
            e.i(f"v_permlane16_swap_b32 v{q}, v{q+2}")
            e.i(f"v_permlane16_swap_b32 v{q+1}, v{q+3}")
    import os
    if os.environ.get("DEBUG_Q"):
        OA = T0 + 4
        e.i(f"v_mbcnt_lo_u32_b32 v{T0}, -1, 0")
        e.i(f"v_mbcnt_hi_u32_b32 v{T0}, -1, v{T0}")
        e.i(f"v_and_b32 v{T0+1}, 15, v{T0}")
        e.i(f"v_lshrrev_b32 v{T0+2}, 4, v{T0}")
        e.i(f"s_mul_i32 s{sTmp}, s{sWave}, 48")
        e.i(f"v_add_u32 v{T0+1}, s{sTmp}, v{T0+1}")
        e.i(f"v_lshlrev_b32 v{T0+1}, 13, v{T0+1}")
        e.i(f"v_lshl_add_u32 v{OA}, v{T0+2}, 4, v{T0+1}")
        e.i(f"v_add_u32 v{OA+1}, 0x20000, v{OA}")
        e.i(f"v_add_u32 v{OA+2}, 0x40000, v{OA}")
        for c in range(4):
            for qt in range(3):
                q = qf(c, qt)
                e.i(f"buffer_store_dwordx4 v[{q}:{q+3}], v{OA+qt}, s[{sO}:{sO+3}], 0 offen offset:{64*c}")
        e.i("s_endpgm")
    for r in range(96):
        e.i(f"v_mov_b32 v{ACC+r}, 0")
    for qt in range(3):
        e.i(f"v_mov_b32 v{MC+qt}, 0xf149f2ca")
        e.i(f"v_mov_b32 v{LS+qt}, 0")
    e.i(f"s_mov_b32 s{sKn}, 2")
    e.i(f"s_mov_b32 s{sVn}, 1")
    e.i(f"s_mov_b32 s{sCnt}, 8")
    stamp()
    e.fence()
    e.label("L_attn_loop")

    import os
    EXP = os.environ.get("EXP", "")

    def loop_issue(slot, is_k):
        if EXP == "noload":
            return
        e.i(f"s_add_u32 m0, s{sM0}, {slot*16384}")
        srd = sK if is_k else sV
        sn = sKn if is_k else sVn
        e.i(f"s_add_u32 s{sTmp}, s{sT0}, s{sn}")
        e.i(f"s_and_b32 s{sTmp}, s{sTmp}, 15")
        e.i(f"s_lshl_b32 s{sTmp}, s{sTmp}, 14")
        e.i(f"s_cmp_ge_u32 s{sn}, 16")
        e.i(f"s_cselect_b32 s{sTmp}, 0x40000000, s{sTmp}")
        e.i(f"s_add_u32 s{sn}, s{sn}, 1")
        for i in range(4):
            e.i(f"buffer_load_dwordx4 v{DE if i%2==0 else DO}, s[{srd}:{srd+3}], s{sTmp} offen offset:{1024*i}{NT} lds")

    for half in range(2):
        ks, vs = 2 * half, 2 * half + 1
        e.i("s_waitcnt vmcnt(8)")
        e.i("s_barrier")
        loop_issue((ks + 3) % 4, False)
        if EXP == "nocompute":
            e.i("s_waitcnt vmcnt(8)")
            e.i("s_barrier")
            loop_issue((vs + 3) % 4, True)
            continue
        order = [(kt, c) for kt in range(4) for c in range(4)]
        n = len(order)
        issued = 0

        def kissue(i):
            kt, c = order[i]
            f = fr(i)
            e.i(f"ds_read_b128 v[{f}:{f+3}], v{KA+c} offset:{ks*16384 + kt*4096}")

        while issued < 8:
            kissue(issued)
            issued += 1
        for i in range(n):
            kt, c = order[i]
            e.i(f"s_waitcnt lgkmcnt({issued-i-1})")
            f = fr(i)
            for qt in range(3):
                s = ss(kt, qt)
                q = qf(c, qt)
                cin = "0" if c == 0 else f"v[{s}:{s+3}]"
                e.i(f"v_mfma_f32_16x16x32_bf16 v[{s}:{s+3}], v[{f}:{f+3}], v[{q}:{q+3}], {cin}")
            if issued < n:
                kissue(issued)
                issued += 1
        tm = T0
        tu = T0 + 3
        for qt in range(3):
            vals = [ss(kt, qt) + r for kt in range(4) for r in range(4)]
            e.i(f"v_max3_f32 v{tm+qt}, v{vals[0]}, v{vals[1]}, v{vals[2]}")
            k = 3
            while k < 16:
                v2 = vals[k + 1] if k + 1 < 16 else vals[k]
                e.i(f"v_max3_f32 v{tm+qt}, v{tm+qt}, v{vals[k]}, v{v2}")
                k += 2
        for swap in ("v_permlane32_swap_b32", "v_permlane16_swap_b32"):
            for qt in range(3):
                e.i(f"v_mov_b32 v{tu+qt}, v{tm+qt}")
            for qt in range(3):
                e.i(f"{swap} v{tm+qt}, v{tu+qt}")
            for qt in range(3):
                e.i(f"v_max_f32 v{tm+qt}, v{tm+qt}, v{tu+qt}")
        for qt in range(3):
            e.i(f"v_mul_f32 v{tm+qt}, s{sC}, v{tm+qt}")
        for qt in range(3):
            e.i(f"v_sub_f32 v{tu+qt}, v{tm+qt}, v{MC+qt}")
        e.i(f"v_max3_f32 v{tu}, v{tu}, v{tu+1}, v{tu+2}")
        e.i(f"v_cmp_lt_f32 vcc, 0x41000000, v{tu}")
        e.i("s_nop 4")
        lbl = f"L_attn_nors{half}"
        e.i(f"s_cbranch_vccz {lbl}")
        for qt in range(3):
            e.i(f"v_max_f32 v{tm+qt}, v{tm+qt}, v{MC+qt}")
        for qt in range(3):
            e.i(f"v_sub_f32 v{tu+qt}, v{MC+qt}, v{tm+qt}")
        for qt in range(3):
            e.i(f"v_exp_f32 v{tu+qt}, v{tu+qt}")
        for qt in range(3):
            e.i(f"v_mov_b32 v{MC+qt}, v{tm+qt}")
        for qt in range(3):
            e.i(f"v_mul_f32 v{LS+qt}, v{LS+qt}, v{tu+qt}")
        for dt in range(8):
            for qt in range(3):
                for r in range(4):
                    a = ACC + (dt * 3 + qt) * 4 + r
                    e.i(f"v_mul_f32 v{a}, v{a}, v{tu+qt}")
        e.label(lbl)
        e.fence()
        for qt in range(3):
            for kt in range(4):
                for r in range(4):
                    s = ss(kt, qt) + r
                    e.i(f"v_fma_f32 v{s}, v{s}, s{sC}, -v{MC+qt}")
        for kt in range(4):
            for r in range(4):
                for qt in range(3):
                    s = ss(kt, qt) + r
                    e.i(f"v_exp_f32 v{s}, v{s}")
        for kt in range(4):
            for r in range(4):
                for qt in range(3):
                    s = ss(kt, qt) + r
                    e.i(f"v_add_f32 v{LS+qt}, v{LS+qt}, v{s}")
        for kc in range(2):
            for qt in range(3):
                a = ss(2 * kc, qt)
                b = ss(2 * kc + 1, qt)
                e.i(f"v_cvt_pk_bf16_f32 v{a}, v{a}, v{a+1}")
                e.i(f"v_cvt_pk_bf16_f32 v{a+1}, v{a+2}, v{a+3}")
                e.i(f"v_cvt_pk_bf16_f32 v{a+2}, v{b}, v{b+1}")
                e.i(f"v_cvt_pk_bf16_f32 v{a+3}, v{b+2}, v{b+3}")
        e.i("s_waitcnt vmcnt(8)")
        e.i("s_barrier")
        loop_issue((vs + 3) % 4, True)
        pv_step(e, vs, lambda kc, qt: ss(2 * kc, qt))
    e.i(f"s_sub_u32 s{sCnt}, s{sCnt}, 1")
    e.i(f"s_cmp_lg_u32 s{sCnt}, 0")
    e.i("s_cbranch_scc1 L_attn_loop")
    e.fence()
    stamp()
    tu = T0
    for swap in ("v_permlane32_swap_b32", "v_permlane16_swap_b32"):
        for qt in range(3):
            e.i(f"v_mov_b32 v{tu+qt}, v{LS+qt}")
        for qt in range(3):
            e.i(f"{swap} v{LS+qt}, v{tu+qt}")
        for qt in range(3):
            e.i(f"v_add_f32 v{LS+qt}, v{LS+qt}, v{tu+qt}")
    for qt in range(3):
        e.i(f"v_rcp_f32 v{LS+qt}, v{LS+qt}")
    for dt in range(8):
        for qt in range(3):
            for r in range(4):
                a = ACC + (dt * 3 + qt) * 4 + r
                e.i(f"v_mul_f32 v{a}, v{a}, v{LS+qt}")
    OA = T0 + 4
    e.i(f"v_mbcnt_lo_u32_b32 v{T0}, -1, 0")
    e.i(f"v_mbcnt_hi_u32_b32 v{T0}, -1, v{T0}")
    e.i(f"s_mul_i32 s{sTmp}, s{sWave}, {3*131072}")
    e.i(f"v_lshlrev_b32 v{OA}, 4, v{T0}")
    e.i(f"v_add_u32 v{OA}, s{sTmp}, v{OA}")
    e.i(f"v_add_u32 v{OA+1}, 0x20000, v{OA}")
    e.i(f"v_add_u32 v{OA+2}, 0x40000, v{OA}")
    for c in range(4):
        for qt in range(3):
            a = ACC + ((2 * c) * 3 + qt) * 4
            b = ACC + ((2 * c + 1) * 3 + qt) * 4
            q = qf(c, qt)
            e.i(f"v_cvt_pk_bf16_f32 v{q}, v{a}, v{a+1}")
            e.i(f"v_cvt_pk_bf16_f32 v{q+1}, v{a+2}, v{a+3}")
            e.i(f"v_cvt_pk_bf16_f32 v{q+2}, v{b}, v{b+1}")
            e.i(f"v_cvt_pk_bf16_f32 v{q+3}, v{b+2}, v{b+3}")
            e.i(f"buffer_store_dwordx4 v[{q}:{q+3}], v{OA+qt}, s[{sO}:{sO+3}], 0 offen offset:{1024*c}")
    if STAMP:
        stamp()
        e.i("s_waitcnt lgkmcnt(0)")
        e.i(f"s_mov_b32 s{sO+2}, 0x7fffffff")
        e.i("s_lshl_b32 s3, s2, 6")
        e.i("s_add_u32 s3, s3, 0xc800000")
        e.i("s_sub_u32 s3, s3, s51")
        for k in range(nst[0]):
            e.i(f"v_mov_b32 v{2*k}, s{60+2*k}")
            e.i(f"v_mov_b32 v{2*k+1}, s{61+2*k}")
        e.i("v_mov_b32 v20, 0")
        e.i(f"buffer_store_dwordx4 v[0:3], v20, s[{sO}:{sO+3}], s3 offen")
        e.i(f"buffer_store_dwordx4 v[4:7], v20, s[{sO}:{sO+3}], s3 offen offset:16")
    e.label("L_attn_end")
    e.i("s_endpgm")


def kernel_oproj(e):
    KN = "oproj_kernel"
    e.raw(f".globl {KN}\n.p2align 8\n.type {KN},@function\n{KN}:")
    sWo, sOi, sP = 8, 12, 16
    sWave, sM0, sTmp, sSo = 28, 29, 32, 33
    e.i("s_cmp_ge_u32 s2, 256")
    e.i("s_cbranch_scc1 L_oproj_end")
    e.i("s_and_b32 s40, s2, 3")
    e.i("s_lshr_b32 s41, s2, 2")
    e.i("s_and_b32 s41, s41, 7")
    e.i("s_lshr_b32 s42, s2, 5")
    e.i("s_and_b32 s42, s42, 1")
    e.i("s_lshr_b32 s43, s2, 6")
    e.i("s_mul_i32 s3, s42, 40")
    e.i("s_add_u32 s4, s0, s3")
    e.i("s_addc_u32 s5, s1, 0")
    e.i("s_load_dwordx2 s[36:37], s[4:5], 32")
    e.i("s_load_dwordx2 s[44:45], s[0:1], 96")
    e.i("v_lshrrev_b32 v1, 6, v0")
    e.i("s_nop 0")
    e.i("v_readfirstlane_b32 s28, v1")
    e.i("s_waitcnt lgkmcnt(0)")
    e.i("s_lshl_b32 s46, s40, 8")
    e.i("s_lshl_b32 s47, s43, 20")
    e.i("s_add_u32 s46, s46, s47")
    e.i(f"s_add_u32 s{sWo}, s36, s46")
    e.i(f"s_addc_u32 s{sWo+1}, s37, 0")
    e.i(f"s_mov_b32 s{sWo+2}, {1023*1024+256}")
    e.i(f"s_mov_b32 s{sWo+3}, 0x00020000")
    e.i("s_mul_i32 s46, s42, 12582912")
    e.i("s_mul_i32 s47, s41, 1572864")
    e.i("s_add_u32 s46, s46, s47")
    e.i("s_lshl_b32 s47, s43, 15")
    e.i("s_add_u32 s46, s46, s47")
    e.i(f"s_add_u32 s{sOi}, s44, s46")
    e.i(f"s_addc_u32 s{sOi+1}, s45, 0")
    e.i(f"s_mov_b32 s{sOi+2}, {11*131072+32768}")
    e.i(f"s_mov_b32 s{sOi+3}, 0x00020000")
    e.i("s_lshl_b32 s46, s43, 1")
    e.i("s_add_u32 s46, s46, s42")
    e.i("s_mul_i32 s46, s46, 1536")
    e.i("s_mul_i32 s47, s41, 192")
    e.i("s_add_u32 s46, s46, s47")
    e.i("s_lshl_b32 s46, s46, 11")
    e.i("s_lshl_b32 s47, s40, 9")
    e.i("s_add_u32 s46, s46, s47")
    e.i("s_add_u32 s46, s46, 0x2000000")
    e.i(f"s_add_u32 s{sP}, s44, s46")
    e.i(f"s_addc_u32 s{sP+1}, s45, 0")
    e.i(f"s_mov_b32 s{sP+2}, {191*2048+512}")
    e.i(f"s_mov_b32 s{sP+3}, 0x00020000")
    e.i(f"s_lshl_b32 s{sM0}, s{sWave}, 12")
    e.i("s_lshr_b32 s58, s2, 3")
    e.i("s_and_b32 s58, s58, 15")
    setup_lds_addrs(e, sWave)
    dma_regs(e, sWave, 10, DE, DO)
    OST = None
    STG = 40960
    XG = T0 + 8
    XL = T0 + 9
    XL2 = T0 + 10
    VA2 = 100
    BF = 110
    e.i(f"v_mbcnt_lo_u32_b32 v{T0}, -1, 0")
    e.i(f"v_mbcnt_hi_u32_b32 v{T0}, -1, v{T0}")
    e.i(f"s_mul_i32 s{sTmp}, s{sWave}, {3*131072}")
    e.i(f"v_lshlrev_b32 v{T0}, 4, v{T0}")
    e.i(f"v_add_u32 v{XG}, s{sTmp}, v{T0}")
    e.i(f"s_mul_i32 s{sTmp}, s{sWave}, 6144")
    e.i(f"v_add_u32 v{XL}, s{sTmp}, v{T0}")
    e.i(f"v_add_u32 v{XL2}, {2*STG}, v{XL}")
    for dt in range(8):
        e.i(f"v_add_u32 v{VA2+dt}, {2*STG}, v{VA+dt}")
    e.i(f"s_mul_i32 s{sSo}, s{sWave}, 6144")
    for r in range(96):
        e.i(f"v_mov_b32 v{ACC+r}, 0")
    vq = VmQ()
    NT = 16

    def issue_tile(j):
        st = j % 4
        e.i(f"s_add_u32 s57, s58, {j}")
        e.i(f"s_and_b32 s57, s57, 15")
        e.i(f"s_lshl_b32 s59, s57, 11")
        e.i(f"s_lshl_b32 s57, s57, 16")
        e.i(f"s_add_u32 m0, s{sM0}, {st*STG}")
        for i in range(4):
            e.i(f"s_add_u32 s{sTmp}, s57, {4*i*1024 - 1024*i}")
            e.i(f"buffer_load_dwordx4 v{DE if i%2==0 else DO}, s[{sWo}:{sWo+3}], s{sTmp} offen offset:{1024*i} lds")
        for qt in range(3):
            e.i(f"s_add_u32 m0, s{sSo}, {st*STG + 16384 + qt*2048}")
            e.i(f"s_add_u32 s{sTmp}, s59, {qt*131072}")
            e.i(f"buffer_load_dwordx4 v{XG}, s[{sOi}:{sOi+3}], s{sTmp} offen lds")
            e.i(f"buffer_load_dwordx4 v{XG}, s[{sOi}:{sOi+3}], s{sTmp} offen offset:1024 lds")
        vq.issue(("T", j), 10)

    for j in range(3):
        issue_tile(j)
    for j in range(NT):
        n = vq.wait_n({("T", j)})
        e.i(f"s_waitcnt vmcnt({n})")
        e.i("s_barrier")
        st = j % 4
        xa = XL if st < 2 else XL2
        bo = (st % 2) * STG
        for qt in range(3):
            for kc in range(2):
                b = BF + (kc * 3 + qt) * 4
                e.i(f"ds_read_b128 v[{b}:{b+3}], v{xa} offset:{bo + 16384 + qt*2048 + kc*1024}")
        if j + 3 < NT:
            issue_tile(j + 3)
        e.i("s_waitcnt lgkmcnt(0)")
        pv_step(e, 0, lambda kc, qt: BF + (kc * 3 + qt) * 4, va=(VA if st < 2 else VA2), boff=bo)
    OA = T0 + 4
    e.i(f"v_mbcnt_lo_u32_b32 v{T0}, -1, 0")
    e.i(f"v_mbcnt_hi_u32_b32 v{T0}, -1, v{T0}")
    e.i(f"v_and_b32 v{T0+1}, 15, v{T0}")
    e.i(f"v_lshrrev_b32 v{T0+2}, 4, v{T0}")
    e.i(f"s_mul_i32 s{sTmp}, s{sWave}, 48")
    e.i(f"v_add_u32 v{T0+1}, s{sTmp}, v{T0+1}")
    e.i(f"v_lshlrev_b32 v{T0+1}, 11, v{T0+1}")
    e.i(f"v_lshl_add_u32 v{OA}, v{T0+2}, 4, v{T0+1}")
    e.i(f"v_add_u32 v{OA+1}, 0x8000, v{OA}")
    e.i(f"v_add_u32 v{OA+2}, 0x10000, v{OA}")
    for nt in range(8):
        for qt in range(3):
            a = ACC + (nt * 3 + qt) * 4
            e.i(f"buffer_store_dwordx4 v[{a}:{a+3}], v{OA+qt}, s[{sP}:{sP+3}], 0 offen offset:{64*nt}")
    if OST:
        e.i("s_memtime s[60:61]")
        e.i("s_waitcnt lgkmcnt(0)")
        e.i("s_sub_u32 s67, s60, s64")
        e.i(f"s_mov_b32 s{sP}, s44")
        e.i(f"s_mov_b32 s{sP+1}, s45")
        e.i(f"s_mov_b32 s{sP+2}, 0x7fffffff")
        e.i("s_lshl_b32 s3, s2, 6")
        e.i("s_lshl_b32 s68, s28, 4")
        e.i("s_add_u32 s3, s3, s68")
        e.i("s_add_u32 s3, s3, 0xc900000")
        e.i("v_mov_b32 v0, s62")
        e.i("v_mov_b32 v1, s63")
        e.i("v_mov_b32 v2, s67")
        e.i("v_mov_b32 v3, 0")
        e.i("v_mov_b32 v20, 0")
        e.i(f"buffer_store_dwordx4 v[0:3], v20, s[{sP}:{sP+3}], s3 offen")
    e.label("L_oproj_end")
    e.i("s_endpgm")


def kernel_reduce(e):
    KN = "reduce_kernel"
    e.raw(f".globl {KN}\n.p2align 8\n.type {KN},@function\n{KN}:")
    e.i("s_cmp_ge_u32 s2, 768")
    e.i("s_cbranch_scc1 L_red_end")
    e.i("s_load_dwordx2 s[4:5], s[0:1], 80")
    e.i("s_load_dwordx2 s[6:7], s[0:1], 96")
    e.i("s_lshl_b32 s3, s2, 8")
    e.i("v_add_u32 v1, s3, v0")
    e.i("s_waitcnt lgkmcnt(0)")
    e.i("s_add_u32 s8, s6, 0x2000000")
    e.i("s_addc_u32 s9, s7, 0")
    e.i(f"s_mov_b32 s10, {4*2*1536*2048}")
    e.i("s_mov_b32 s11, 0x00020000")
    e.i("s_mov_b32 s12, s4")
    e.i("s_mov_b32 s13, s5")
    e.i(f"s_mov_b32 s14, {1536*2048}")
    e.i("s_mov_b32 s15, 0x00020000")
    e.i("v_lshlrev_b32 v2, 5, v1")
    e.i("s_mov_b32 s16, 6291456")
    for sk in range(4):
        e.i(f"s_mul_i32 s17, s16, {sk}")
        e.i(f"buffer_load_dwordx4 v[{8+8*sk}:{11+8*sk}], v2, s[8:11], s17 offen")
        e.i(f"buffer_load_dwordx4 v[{12+8*sk}:{15+8*sk}], v2, s[8:11], s17 offen offset:16")
    e.i("v_cmp_le_u32 vcc, 98304, v1")
    e.i("v_cndmask_b32 v3, 0, 1, vcc")
    e.i("v_mul_u32_u24 v4, 98304, v3")
    e.i("v_sub_u32 v4, v1, v4")
    e.i("v_lshrrev_b32 v5, 6, v4")
    e.i("v_and_b32 v6, 63, v4")
    e.i("v_lshlrev_b32 v5, 11, v5")
    e.i("v_lshl_add_u32 v5, v3, 10, v5")
    e.i("v_lshl_add_u32 v5, v6, 4, v5")
    e.i("s_waitcnt vmcnt(0)")
    for sk in range(1, 4):
        for k in range(8):
            e.i(f"v_add_f32 v{8+k}, v{8+k}, v{8+8*sk+k}")
    e.i("v_cvt_pk_bf16_f32 v40, v8, v9")
    e.i("v_cvt_pk_bf16_f32 v41, v10, v11")
    e.i("v_cvt_pk_bf16_f32 v42, v12, v13")
    e.i("v_cvt_pk_bf16_f32 v43, v14, v15")
    e.i("buffer_store_dwordx4 v[40:43], v5, s[12:15], 0 offen")
    e.label("L_red_end")
    e.i("s_endpgm")


def desc(name, vgpr, sgpr=64):
    acc_off = (vgpr + 3) // 4 * 4
    return f""".amdhsa_kernel {name}
  .amdhsa_next_free_vgpr {vgpr}
  .amdhsa_next_free_sgpr {sgpr}
  .amdhsa_accum_offset {acc_off}
  .amdhsa_group_segment_fixed_size 0
  .amdhsa_kernarg_size 104
  .amdhsa_user_sgpr_count 2
  .amdhsa_user_sgpr_kernarg_segment_ptr 1
  .amdhsa_system_sgpr_workgroup_id_x 1
.end_amdhsa_kernel
"""


def main():
    e = Em()
    hdr = """; fused MHA block x2: attn (q-proj + flash attention, o -> ws) ; oproj (split-K 4 partials -> ws) ; reduce
; @launch kernel=attn_kernel grid=(512,1,1) block=(256,1,1) lds=65536
; @launch kernel=oproj_kernel grid=(256,1,1) block=(256,1,1) lds=163840
; @launch kernel=reduce_kernel grid=(768,1,1) block=(256,1,1) lds=0
.amdgcn_target "amdgcn-amd-amdhsa--gfx950"
.text"""
    e.raw(hdr)
    kernel_attn(e)
    e.hist = []
    kernel_oproj(e)
    e.hist = []
    kernel_reduce(e)
    e.raw('.section .rodata,"a"\n.p2align 6')
    e.raw(desc("attn_kernel", 256))
    e.raw(".p2align 6")
    e.raw(desc("oproj_kernel", 256))
    e.raw(".p2align 6")
    e.raw(desc("reduce_kernel", 48, 32))
    open(OUT, "w").write("\n".join(e.lines) + "\n")
    print("wrote", OUT, len(e.lines), "lines")


if __name__ == "__main__":
    main()
```
